```python
import torch

def _softmax(x, axis=-1):
    return torch.softmax(x, dim=axis)
def _gelu(x):
    return torch.nn.functional.gelu(x, approximate="tanh")
def _silu(x):
    return torch.nn.functional.silu(x)
def _sigmoid(x):
    return torch.sigmoid(x)
def _layernorm(x, axis=-1, eps=1e-5):
    m = x.mean(dim=axis, keepdim=True)
    v = x.var(dim=axis, keepdim=True, unbiased=False)
    return (x - m) / torch.sqrt(v + eps)
def _scatter_add(tgt, idx, src, axis=0):
    return tgt.clone().index_add_(axis, idx, src)
def _segment_sum(src, seg, n):
    out = torch.zeros((n,) + src.shape[1:], dtype=src.dtype)
    return out.index_add_(0, seg, src)
def _pad(x, pw):
    flat = tuple(v for pair in reversed(pw) for v in pair)
    return torch.nn.functional.pad(x, flat)

kernel_name = 'sequential_preLN__compressed_kv_cla__glu_gated_reglu__decode'

def setup_inputs():

    _w = (lambda a: (lambda t: t.to(torch.bfloat16) if t.is_floating_point() else t)(torch.as_tensor(a)))
    def _A_setup():
        B, H, Sq, Sk, D, M = 4, 32, 1, 4096, 128, 512
        Dc = 4 * D
        return {
            "x": _w((lambda *s: torch.randn(*s, dtype=torch.bfloat16) * 0.05)(B, Sq, M)),
            "c_kv": _w((lambda *s: torch.randn(*s, dtype=torch.bfloat16) * 0.8)(B, Sk, Dc)),
            "w_q": _w((lambda *s: torch.randn(*s, dtype=torch.bfloat16) * 1.6)(M, H, D) * (M ** -0.5)),
            "w_uk": _w((lambda *s: torch.randn(*s, dtype=torch.bfloat16) * 1.6)(Dc, H, D) * (Dc ** -0.5)),
            "w_uv": _w((lambda *s: torch.randn(*s, dtype=torch.bfloat16) * 0.8)(Dc, H, D) * (Dc ** -0.5)),
            "w_o": _w((lambda *s: torch.randn(*s, dtype=torch.bfloat16) * 0.8)(H, D, M) * ((H * D) ** -0.5)),
        }
    _A_in = _A_setup()

    def _B_setup():
        B, S, D, F = 4, 1, 512, 1376
        return {
            "x": _w((lambda *s: torch.randn(*s, dtype=torch.bfloat16) * 0.05)(B, S, D)),
            "W_gate": _w((lambda *s: torch.randn(*s, dtype=torch.bfloat16) * 0.4)(D, F) * (2.0 / D) ** 0.5),
            "W_up": _w((lambda *s: torch.randn(*s, dtype=torch.bfloat16) * 0.4)(D, F) * (2.0 / D) ** 0.5),
            "W_down": _w((lambda *s: torch.randn(*s, dtype=torch.bfloat16) * 0.4)(F, D) * (1.0 / F) ** 0.5),
        }
    _B_in = _B_setup()

    return {
        "A_x": _A_in["x"],
        "A_c_kv": _A_in["c_kv"],
        "A_w_q": _A_in["w_q"],
        "A_w_uk": _A_in["w_uk"],
        "A_w_uv": _A_in["w_uv"],
        "A_w_o": _A_in["w_o"],
        "B_x": _B_in["x"],
        "B_W_gate": _B_in["W_gate"],
        "B_W_up": _B_in["W_up"],
        "B_W_down": _B_in["W_down"],
    }

def reference(A_x, A_c_kv, A_w_q, A_w_uk, A_w_uv, A_w_o, B_x, B_W_gate, B_W_up, B_W_down):
    def _A_ref(x, c_kv, w_q, w_uk, w_uv, w_o):
        B, Sq, M = x.shape[0], x.shape[1], x.shape[2]
        Sk = c_kv.shape[1]
        H, D = w_q.shape[1], w_q.shape[2]
        q = torch.einsum("bqm,mhd->bhqd", x, w_q)
        k = torch.einsum("bkc,chd->bhkd", c_kv, w_uk)
        v = torch.einsum("bkc,chd->bhkd", c_kv, w_uv)
        scores = torch.einsum("bhqd,bhkd->bhqk", q, k) * (D ** -0.5)
        off = Sk - Sq
        qi = torch.arange(Sq)[:, None]
        kj = torch.arange(Sk)[None, :]
        cmask = kj <= (qi + off)
        scores = torch.where(cmask[None, None], scores, -1e9)
        p = _softmax(scores, axis=-1)
        ctx = torch.einsum("bhqk,bhkd->bhqd", p, v)
        return torch.einsum("bhqd,hdm->bqm", ctx, w_o)

    def _B_ref(x, W_gate, W_up, W_down):
        gate = torch.einsum("bsd,df->bsf", x, W_gate)
        up = torch.einsum("bsd,df->bsf", x, W_up)
        gate = gate * (lambda x, dt: x.to(dt))(gate > 0, gate.dtype)
        h = gate * up
        return torch.einsum("bsf,fd->bsd", h, W_down)

    x = A_x
    h = x + _A_ref(_layernorm(x, axis=-1), A_c_kv, A_w_q, A_w_uk, A_w_uv, A_w_o)
    h2 = h + _B_ref(_layernorm(h, axis=-1), B_W_gate, B_W_up, B_W_down)
    return h2
```

```python
import re

TRANS = ("v_exp_f32", "v_log_f32", "v_rcp_f32", "v_rsq_f32", "v_sqrt_f32", "v_sin_f32", "v_cos_f32")

def regs_of(tok):
    tok = tok.strip()
    neg = tok.lstrip('-')
    if neg.startswith('abs(') or neg.startswith('|'):
        neg = neg.replace('abs(', '').replace(')', '').replace('|', '')
    m = re.fullmatch(r'([vas])\[(\d+):(\d+)\]', neg)
    if m:
        return {(m.group(1), i) for i in range(int(m.group(2)), int(m.group(3)) + 1)}
    m = re.fullmatch(r'([vas])(\d+)', neg)
    if m:
        return {(m.group(1), int(m.group(2)))}
    if neg == 'vcc':
        return {('s', 'vcc')}
    if neg == 'm0':
        return {('s', 'm0')}
    if neg == 'exec':
        return {('s', 'exec')}
    return set()

class Ins:
    def __init__(self, text):
        self.text = text
        t = text.split(';')[0].strip()
        self.is_label = t.endswith(':')
        self.is_dir = t.startswith('.') or t == ''
        self.op = ''
        self.w = set(); self.r = set()
        if self.is_label or self.is_dir:
            return
        sp = t.split(None, 1)
        self.op = op = sp[0]
        rest = sp[1] if len(sp) > 1 else ''
        ops = [x.strip() for x in rest.split(',')] if rest else []
        if ops:
            last = ops[-1].split()
            ops[-1] = last[0] if last else ''
            self.mods = ' '.join(last[1:])
        else:
            self.mods = ''
        self.ops = ops
        self.mfma = op.startswith('v_mfma')
        self.valu = op.startswith('v_') and not self.mfma
        self.salu = op.startswith('s_')
        self.ds = op.startswith('ds_')
        self.vmem = op.startswith('buffer_') or op.startswith('global_')
        self.dpp = ('_dpp' in op) or ('row_' in rest) or ('quad_perm' in rest)
        self.perml = op.startswith('v_permlane')
        self.trans = any(op.startswith(x) for x in TRANS)
        self.lds_dma = self.vmem and (' lds' in (' ' + rest) or 'load_lds' in op)
        R = [regs_of(o) for o in ops]
        allr = set().union(*R) if R else set()
        if self.mfma:
            self.w = R[0]; self.r = set().union(*R[1:]); self.srcc = R[3]; self.srcab = R[1] | R[2]
        elif self.valu:
            if op.startswith('v_cmp'):
                self.w = R[0]; self.r = set().union(*R[1:])
            elif self.perml and 'swap' in op:
                self.w = R[0] | R[1]; self.r = R[0] | R[1]
            elif op.startswith('v_readfirstlane') or op.startswith('v_readlane'):
                self.w = R[0]; self.r = set().union(*R[1:])
            elif op.startswith(('v_add_co', 'v_addc_co', 'v_sub_co')):
                self.w = R[0] | R[1]; self.r = set().union(*R[2:])
            else:
                self.w = R[0]; self.r = set().union(*R[1:]) if len(R) > 1 else set()
                if op.startswith(('v_fmac', 'v_mac')) or self.dpp or op.startswith('v_writelane'):
                    self.r |= R[0]
                if op.startswith('v_cndmask') and len(ops) == 3:
                    self.r |= {('s', 'vcc')}
        elif self.ds:
            if op.startswith(('ds_read', 'ds_bpermute', 'ds_permute', 'ds_swizzle')):
                self.w = R[0]; self.r = set().union(*R[1:])
            else:
                self.r = allr
        elif self.vmem:
            if 'store' in op or 'atomic' in op:
                self.r = allr
                self.store_data = (R[0] if op.startswith('buffer_') else R[1])
                self.wide_store = op.endswith('x4') or op.endswith('x3')
            elif self.lds_dma:
                self.r = allr | {('s', 'm0')}
            else:
                self.w = R[0]; self.r = set().union(*R[1:])
        elif self.salu:
            if op.startswith(('s_cmp', 's_cbranch', 's_branch', 's_waitcnt', 's_barrier', 's_nop', 's_endpgm', 's_bitcmp', 's_setprio', 's_sleep')):
                self.r = allr
            elif op.startswith(('s_load', 's_memrealtime', 's_memtime', 's_getreg', 's_getpc')):
                self.w = R[0]; self.r = set().union(*R[1:]) if len(R) > 1 else set()
            elif 'saveexec' in op:
                self.w = R[0] | {('s', 'exec')}; self.r = set().union(*R[1:])
            else:
                self.w = R[0]; self.r = set().union(*R[1:]) if len(R) > 1 else set()
    def states(self):
        if self.op == 's_nop':
            return int(self.ops[0], 0) + 1
        return 1

def vg(s):
    return {x for x in s if x[0] in 'va'}
def sg(s):
    return {x for x in s if x[0] == 's'}

def need(prev, cur):
    n = 0
    if prev.mfma:
        if cur.mfma:
            if prev.w & cur.srcab: n = max(n, 8)
            if prev.w & cur.srcc and prev.w != cur.srcc: n = max(n, 6)
            if prev.w & cur.w and not (prev.w == cur.srcc): n = max(n, 6)
        else:
            if prev.w & (vg(cur.r) | vg(cur.w)): n = max(n, 8)
            if cur.valu and (prev.srcc & vg(cur.w)): n = max(n, 3)
    if prev.valu:
        if cur.mfma and (vg(prev.w) & cur.r): n = max(n, 2)
        if (cur.valu and cur.dpp) and (vg(prev.w) & cur.r): n = max(n, 2)
        if cur.valu and cur.perml and (vg(prev.w) & cur.r): n = max(n, 2)
        if prev.trans and cur.valu and (vg(prev.w) & cur.r): n = max(n, 1)
        if cur.valu and cur.op.startswith(('v_readlane', 'v_readfirstlane')) and (vg(prev.w) & cur.r): n = max(n, 1)
        sw = sg(prev.w)
        if sw:
            if cur.valu and (sw & cur.r): n = max(n, 2)
            if cur.valu and cur.op.startswith(('v_readlane', 'v_writelane')) and (sw & cur.r): n = max(n, 4)
            if cur.vmem and (sw & cur.r): n = max(n, 5)
            if cur.salu and (sw & cur.r): n = max(n, 1)
            if cur.op.startswith('s_cbranch_vcc') and ('s', 'vcc') in sw: n = max(n, 1)
    if prev.salu and ('s', 'm0') in prev.w and cur.vmem and cur.lds_dma: n = max(n, 1)
    if prev.salu and ('s', 'exec') in prev.w and cur.valu and cur.dpp: n = max(n, 1)
    if prev.vmem and getattr(prev, 'wide_store', False):
        if vg(cur.w) & prev.store_data: n = max(n, 2)
    return n

class Asm:
    def __init__(self):
        self.lines = []
        self.uid = 0
    def __call__(self, text):
        for ln in text.split('\n'):
            ln = ln.strip()
            if ln: self.lines.append(ln)
    def label(self, base):
        self.uid += 1
        return f"{base}_{self.uid}"
    def finish(self):
        out = []
        hist = []
        nn = 0
        for ln in self.lines:
            if ln.startswith(';'):
                out.append('    ' + ln); continue
            ins = Ins(ln)
            if ins.is_label:
                out.append(ln); continue
            if ins.is_dir:
                out.append(ln); continue
            dist = 0; pad = 0
            for p in reversed(hist):
                req = need(p, ins)
                if req > dist: pad = max(pad, req - dist)
                dist += p.states()
                if dist >= 12: break
            if pad:
                nop = Ins(f"s_nop {pad-1}")
                out.append(f"    s_nop {pad-1}"); hist.append(nop); nn += 1
            out.append('    ' + ln); hist.append(ins)
            if len(hist) > 24: hist = hist[-24:]
        self.nops = nn
        return '\n'.join(out)
```

```python
from gen import *

vK, vVlo, vVhi, vQ0, vQ1, vCK0, vCK1 = "v96", "v97", "v98", "v99", "v100", "v101", "v102"
vMXw, vMXr, vPBw, vPBr, vVDw, vVDr, vOA, vOB, vST = "v103", "v104", "v105", "v106", "v107", "v108", "v109", "v110", "v111"
vWUV, vWO = "v112", "v113"
sO, sST = "s76", "s77"
sUVo, sUVm, sWOo, sWOm = sT[5], sT[6], sT[7], sT[8]

def b_addr(g):
    a = g.a; t0, t1 = sT[0], sT[1]
    a(f"s_lshl_b32 {t0}, {sW}, 4")
    a(f"v_add_u32 v8, {t0}, {vJ}")
    a(f"v_mul_u32_u24 v8, {KVP}, v8")
    a(f"v_lshl_add_u32 {vK}, {vG}, 4, v8")
    a(f"v_lshrrev_b32 v8, 2, {vJ}")
    a(f"v_lshl_add_u32 v8, {vG}, 2, v8")
    a(f"v_mul_u32_u24 v8, {KVP}, v8")
    a(f"v_and_b32 v9, 3, {vL}")
    a(f"v_lshl_add_u32 v8, v9, 3, v8")
    a(f"s_lshl_b32 {t0}, {sW}, 7")
    a(f"v_add_u32 {vVlo}, {t0}, v8")
    a(f"v_add_u32 {vVhi}, {64*KVP}, {vVlo}")
    a(f"v_lshrrev_b32 v8, 1, {vJ}")
    a(f"v_xor_b32 v8, v8, {vG}")
    a(f"v_lshlrev_b32 v9, 7, {vJ}")
    a(f"v_add_u32 v9, {QS}, v9")
    a(f"v_lshl_add_u32 {vQ0}, v8, 4, v9")
    a(f"v_xor_b32 v8, 4, v8")
    a(f"v_lshl_add_u32 {vQ1}, v8, 4, v9")
    a(f"s_lshl_b32 {t0}, {sW}, 12")
    a(f"s_add_u32 {t0}, {t0}, {QS}")
    a(f"v_lshlrev_b32 v9, 4, {vL}")
    a(f"v_add_u32 {vCK0}, {t0}, v9")
    a(f"v_lshlrev_b32 v8, 5, {vJ}")
    a(f"v_add_u32 {vMXr}, {MX}, v8")
    a(f"s_lshl_b32 {t0}, {sW}, 2")
    a(f"v_add_u32 {vMXw}, {t0}, {vMXr}")
    a(f"v_lshlrev_b32 v8, 4, {vL}")
    a(f"v_add_u32 {vPBr}, {PB}, v8")
    a(f"s_lshr_b32 {t1}, {sW}, 1")
    a(f"s_lshl_b32 {t1}, {t1}, 10")
    a(f"s_and_b32 {t0}, {sW}, 1")
    a(f"s_lshl_b32 {t0}, {t0}, 3")
    a(f"s_add_u32 {t1}, {t1}, {t0}")
    a(f"v_add_u32 {vPBw}, {t1}, {vPBr}")
    a(f"v_and_b32 v8, 7, {vJ}")
    a(f"v_lshlrev_b32 v8, 17, v8")
    a(f"v_lshrrev_b32 v9, 3, {vJ}")
    a(f"v_lshl_add_u32 v8, v9, 6, v8")
    a(f"v_lshl_add_u32 {vOA}, {vG}, 4, v8")
    a(f"v_xor_b32 {vOB}, 64, {vOA}")
    a(f"v_add_u32 {vOB}, 0x100000, {vOB}")
    a(f"s_lshl_b32 {sO}, {sHG}, 21")
    a(f"s_lshl_b32 {t0}, {sW}, 14")
    a(f"s_add_u32 {sO}, {sO}, {t0}")
    a(f"s_lshl_b32 {t0}, {sB}, 12")
    a(f"s_add_u32 {sO}, {sO}, {t0}")
    a(f"s_lshl_b32 {t0}, {sKC}, 7")
    a(f"s_add_u32 {sO}, {sO}, {t0}")
    a(f"s_add_u32 {sO}, {sO}, {H3}")
    a(f"v_lshlrev_b32 {vST}, 11, {vJ}")
    a(f"s_lshl_b32 {sST}, {sHG}, 15")
    a(f"s_lshl_b32 {t0}, {sB}, 9")
    a(f"s_add_u32 {sST}, {sST}, {t0}")
    a(f"s_lshl_b32 {t0}, {sKC}, 4")
    a(f"s_add_u32 {sST}, {sST}, {t0}")
    a(f"s_add_u32 {sST}, {sST}, {STATS}")

def tail_dma_addr(g):
    a = g.a; t0, t1 = sT[0], sT[1]
    a(f"s_and_b32 {t0}, {sW}, 1")
    a(f"s_lshl_b32 {t0}, {t0}, 2")
    a(f"v_add_u32 v8, {t0}, {vG}")
    a(f"v_lshrrev_b32 v9, 1, {vJ}")
    a(f"v_xor_b32 v8, v8, v9")
    a(f"v_lshlrev_b32 v8, 5, v8")
    a(f"v_lshl_add_u32 v8, {vG}, 13, v8")
    a(f"v_and_b32 v9, 1, {vL}")
    a(f"v_lshl_add_u32 {vWUV}, v9, 4, v8")
    a(f"s_sub_u32 {t1}, {sW}, 4")
    a(f"s_lshl_b32 {sUVo}, {sI}, 6")
    a(f"s_lshl_b32 {t0}, {t1}, 4")
    a(f"s_add_u32 {sUVo}, {sUVo}, {t0}")
    a(f"s_lshl_b32 {sUVo}, {sUVo}, 13")
    a(f"s_lshl_b32 {t0}, {sH}, 8")
    a(f"s_add_u32 {sUVo}, {sUVo}, {t0}")
    a(f"s_lshl_b32 {sUVm}, {t1}, 12")
    a(f"s_add_u32 {sUVm}, {sUVm}, {WUV}")
    a(f"v_lshrrev_b32 v8, 1, {vL}")
    a(f"v_lshlrev_b32 v8, 10, v8")
    a(f"v_lshl_add_u32 {vWO}, v9, 4, v8")
    a(f"s_lshl_b32 {sWOo}, {sHQ}, 9")
    a(f"s_lshl_b32 {t0}, {t1}, 7")
    a(f"s_add_u32 {sWOo}, {sWOo}, {t0}")
    a(f"s_lshl_b32 {sWOo}, {sWOo}, 10")
    a(f"s_lshl_b32 {t0}, {sMS}, 5")
    a(f"s_add_u32 {sWOo}, {sWOo}, {t0}")
    a(f"s_lshl_b32 {sWOm}, {t1}, 12")
    a(f"s_add_u32 {sWOm}, {sWOm}, {WO}")

def tail_dma(g, n):
    a = g.a
    if n < 4:
        a(f"s_mov_b32 m0, {sUVm}")
        a(f"s_add_u32 {sUVm}, {sUVm}, 1024")
        a(f"buffer_load_dwordx4 {vWUV}, {sWUV}, {sUVo} offen{g.nt} lds")
        a(f"s_add_u32 {sUVo}, {sUVo}, 32768")
    else:
        a(f"s_mov_b32 m0, {sWOm}")
        a(f"s_add_u32 {sWOm}, {sWOm}, 1024")
        a(f"buffer_load_dwordx4 {vWO}, {sWO}, {sWOo} offen{g.nt} lds")
        a(f"s_add_u32 {sWOo}, {sWOo}, 32768")

def qk(g, with_dma):
    a = g.a
    def rd(s):
        a(f"ds_read_b128 {vr(64+4*(s%8),4)}, {vQ0 if s%2==0 else vQ1} offset:{(s>>1)*2048}")
    for s in range(8): rd(s)
    for s in range(16):
        a(f"s_waitcnt lgkmcnt({min(7,15-s)})")
        c = "0" if s == 0 else "v[16:19]"
        a(f"v_mfma_f32_16x16x32_bf16 v[16:19], {ar(4*s,4)}, {vr(64+4*(s%8),4)}, {c}")
        if s + 8 < 16: rd(s + 8)
        if with_dma and 8 <= s < 12:
            tail_dma(g, s - 8)

def phaseB(g):
    a = g.a
    t0, t1 = sT[0], sT[1]
    a("s_barrier")
    g.stamp("x1")
    for s in range(16):
        a(f"ds_read_b128 {ar(4*s,4)}, {vK} offset:{s*64}")
        if s == 9: a("s_waitcnt lgkmcnt(4)")
        if s == 15: a("s_waitcnt lgkmcnt(6)")
    g.stamp("kx")
    n = 0
    for u in range(4):
        for t in range(4):
            for half in range(2):
                base = vVlo if u < 2 else vVhi
                off = (u & 1) * 32 * KVP + half * 16 * KVP + t * 32
                a(f"ds_read_b64_tr_b16 {ar(64+(t*4+u)*4+2*half,2)}, {base} offset:{off}")
                n += 1
                if n % 8 == 0: a("s_waitcnt lgkmcnt(6)")
    g.stamp("vx")
    a(f"s_cmp_ge_u32 {sW}, 4")
    a("s_cbranch_scc1 Q_OK")
    a("Q_CHECK:")
    a("s_waitcnt vmcnt(0)")
    g.stamp("qw")
    for nn in range(4):
        a(f"ds_read_b128 {vr(64+4*nn,4)}, {vCK0} offset:{nn*1024}")
    a("v_mov_b32 v20, 0")
    for nn in range(4):
        a(f"s_waitcnt lgkmcnt({3-nn})")
        for q in range(4):
            a(f"v_bitop3_b32 v20, v20, v{64+4*nn+q}, {sM[q]} bitop3:0xf6")
    g.tagcheck_end("v20", "Q_RETRY")
    a("Q_OK:")
    a("s_waitcnt lgkmcnt(0)")
    a("s_barrier")
    g.stamp("x2")
    a(f"s_cmp_ge_u32 {sW}, 4")
    a("s_cbranch_scc1 QK_DMA")
    a("QK_PLAIN:")
    qk(g, False)
    a("s_branch QK_DONE")
    a("QK_DMA:")
    qk(g, True)
    a("QK_DONE:")
    g.stamp("qk")
    a("v_max3_f32 v21, v16, v17, v18")
    a("v_max_f32 v21, v21, v19")
    g.cross_rows(["v21"], ["v22"], "v_max_f32")
    a(f"ds_write_b32 {vMXw}, v21")
    a("s_waitcnt lgkmcnt(0)")
    a("s_barrier")
    a(f"ds_read_b128 v[24:27], {vMXr}")
    a(f"ds_read_b128 v[28:31], {vMXr} offset:16")
    a("s_waitcnt lgkmcnt(0)")
    a("v_max3_f32 v21, v24, v25, v26")
    a("v_max3_f32 v22, v27, v28, v29")
    a("v_max3_f32 v21, v21, v30, v31")
    a("v_max_f32 v21, v21, v22")
    for r in range(4):
        a(f"v_sub_f32 v{16+r}, v{16+r}, v21")
    for r in range(4):
        a(f"v_exp_f32 v{16+r}, v{16+r}")
    g.stamp("mx")
    a("v_add_f32 v22, v16, v17")
    a("v_add_f32 v23, v18, v19")
    a("v_cvt_pk_bf16_f32 v24, v16, v17")
    a("v_cvt_pk_bf16_f32 v25, v18, v19")
    a("v_add_f32 v22, v22, v23")
    a(f"ds_write_b64 {vPBw}, v[24:25]")
    g.cross_rows(["v22"], ["v23"], "v_add_f32")
    a(f"ds_write_b32 {vMXw}, v22 offset:512")
    a("s_waitcnt lgkmcnt(0)")
    a("s_barrier")
    g.stamp("pb")
    for u in range(4):
        a(f"ds_read_b128 {vr(64+4*u,4)}, {vPBr} offset:{u*1024}")
    lab = a.label("NOSTAT")
    a(f"s_cmp_lg_u32 {sW}, 3")
    a(f"s_cbranch_scc1 {lab}")
    a(f"ds_read_b128 v[24:27], {vMXr} offset:512")
    a(f"ds_read_b128 v[28:31], {vMXr} offset:528")
    a("s_waitcnt lgkmcnt(0)")
    a("v_add_f32 v24, v24, v25"); a("v_add_f32 v26, v26, v27"); a("v_add_f32 v28, v28, v29"); a("v_add_f32 v30, v30, v31")
    a("v_add_f32 v24, v24, v26"); a("v_add_f32 v28, v28, v30")
    a("v_add_f32 v25, v24, v28")
    a("v_mov_b32 v24, v21")
    a(f"v_mov_b32 v26, {sT32}")
    a(f"v_mov_b32 v27, {sT32}")
    a("s_mov_b64 exec, 0xffff")
    a(f"buffer_store_dwordx4 v[24:27], {vST}, {sWS}, {sST} offen sc1")
    a("s_mov_b64 exec, -1")
    a(f"{lab}:")
    for u in range(4):
        a(f"s_waitcnt lgkmcnt({3-u})")
        for t in range(4):
            c = "0" if u == 0 else vr(32+4*t, 4)
            a(f"v_mfma_f32_16x16x32_bf16 {vr(32+4*t,4)}, {ar(64+(t*4+u)*4,4)}, {vr(64+4*u,4)}, {c}")
    a("s_mov_b32 vcc_lo, 0x00ff00ff")
    a("s_mov_b32 vcc_hi, 0x00ff00ff")
    for t in range(4):
        a(f"v_cvt_pk_bf16_f32 v{48+2*t}, v{32+4*t}, v{33+4*t}")
        a(f"v_cvt_pk_bf16_f32 v{49+2*t}, v{34+4*t}, v{35+4*t}")
    for q in range(8):
        a(f"v_bfi_b32 v{48+q}, {vC1}, {sM[q%4]}, v{48+q}")
    for q in range(4):
        a(f"v_cndmask_b32_dpp v{56+q}, v{52+q}, v{48+q}, vcc row_ror:8 row_mask:0xf bank_mask:0xf")
    a("s_not_b64 vcc, vcc")
    a(f"buffer_store_dwordx4 v[56:59], {vOA}, {sWS}, {sO} offen sc1")
    for q in range(4):
        a(f"v_cndmask_b32_dpp v{60+q}, v{52+q}, v{48+q}, vcc row_ror:8 row_mask:0xf bank_mask:0xf")
    a(f"buffer_store_dwordx4 v[60:63], {vOB}, {sWS}, {sO} offen sc1")
    g.stamp("opub")

def q_retry(g):
    a = g.a
    a("Q_RETRY:")
    g.spin_check()
    g.h2_issue()
    a("s_branch Q_CHECK")

def final_reduce(g, acc):
    a = g.a
    a(f"v_lshrrev_b32 v8, 2, {vJ}")
    a(f"v_lshlrev_b32 v8, 8, v8")
    a(f"v_and_b32 v9, 3, {vJ}")
    a(f"v_lshl_add_u32 v8, v9, 6, v8")
    a(f"v_lshl_add_u32 v8, {vG}, 4, v8")
    a(f"v_add_u32 v8, {RED}, v8")

def red_write_addr(g, dst):
    a = g.a
    a(f"v_and_b32 v8, 3, {vJ}")
    a(f"v_lshlrev_b32 v8, 6, v8")
    a(f"v_lshl_add_u32 v8, {vG}, 4, v8")
    a(f"s_lshl_b32 {sT[0]}, {sW}, 8")
    a(f"s_add_u32 {sT[0]}, {sT[0]}, {RED}")
    a(f"v_add_u32 {dst}, {sT[0]}, v8")

def red_read_addr(g, dst):
    a = g.a
    a(f"v_lshrrev_b32 v8, 2, {vJ}")
    a(f"v_lshlrev_b32 v8, 8, v8")
    a(f"v_and_b32 v9, 3, {vJ}")
    a(f"v_lshl_add_u32 v8, v9, 6, v8")
    a(f"v_lshl_add_u32 v8, {vG}, 4, v8")
    a(f"v_add_u32 {dst}, {RED}, v8")

def red_final(g, addr, r0):
    a = g.a
    a(f"ds_read_b128 {vr(r0,4)}, {addr}")
    a(f"ds_read_b128 {vr(r0+4,4)}, {addr} offset:1024")
    a("s_waitcnt lgkmcnt(0)")
    for r in range(4): a(f"v_add_f32 v{r0+r}, v{r0+r}, v{r0+4+r}")
    for sh in (8, 4):
        for r in range(4):
            a(f"v_add_f32_dpp v{r0+r}, v{r0+r}, v{r0+r} row_ror:{sh} row_mask:0xf bank_mask:0xf")

vRW, vRR = "v114", "v115"
vLIN8 = "v116"

def phaseC(g):
    a = g.a
    t0, t1, t2 = sT[0], sT[1], sT[2]
    a(f"v_lshlrev_b32 {vLIN8}, 3, {vL}")
    red_write_addr(g, vRW)
    red_read_addr(g, vRR)
    a(f"s_cmp_ge_u32 {sW}, 4")
    a("s_cbranch_scc1 C_HI")
    a(f"v_and_b32 v8, 31, {vL}")
    a(f"v_lshlrev_b32 v100, 4, v8")
    a(f"s_lshl_b32 {sT[9]}, {sH}, 2")
    a(f"s_add_u32 {sT[9]}, {sT[9]}, {sW}")
    a(f"s_lshl_b32 {sT[9]}, {sT[9]}, 9")
    a(f"s_add_u32 {sT[9]}, {sT[9]}, {STATS}")
    a(f"buffer_load_dwordx4 v[16:19], v100, {sWS}, {sT[9]} offen sc1")
    a(f"v_lshrrev_b32 v8, 3, {vL}")
    a(f"v_lshlrev_b32 v8, 7, v8")
    a(f"v_bfe_u32 v9, {vL}, 1, 2")
    a(f"v_xor_b32 v9, v9, {vG}")
    a(f"v_lshl_add_u32 v8, v9, 5, v8")
    a(f"v_and_b32 v9, 1, {vL}")
    a(f"v_lshl_add_u32 v101, v9, 4, v8")
    a(f"s_lshl_b32 {sT[10]}, {sH}, 3")
    a(f"s_add_u32 {sT[10]}, {sT[10]}, {sI}")
    a(f"s_lshl_b32 {sT[10]}, {sT[10]}, 14")
    a(f"s_lshl_b32 {t0}, {sW}, 12")
    a(f"s_add_u32 {sT[10]}, {sT[10]}, {t0}")
    a(f"s_add_u32 {sT[10]}, {sT[10]}, {H3}")
    a(f"s_add_u32 {sT[11]}, {t0}, {ST3}")
    a(f"v_lshrrev_b32 v8, 2, {vJ}")
    a(f"v_lshl_add_u32 v8, {vG}, 2, v8")
    a(f"v_bfe_u32 v9, v8, 1, 2")
    a(f"v_lshlrev_b32 v9, 5, v9")
    a(f"v_lshl_add_u32 v9, v8, 7, v9")
    a(f"v_and_b32 v8, 3, {vL}")
    a(f"v_lshl_add_u32 v9, v8, 3, v9")
    a(f"v_add_u32 v102, {sT[11]}, v9")
    assert ST3 % 128 == 0
    for tau in range(1, 4):
        a(f"v_xor_b32 v{102+tau}, {tau*32}, v102")
    a(f"s_lshl_b32 {t1}, {sW}, 6")
    a(f"s_add_u32 {t1}, {t1}, {AL}")
    a(f"v_and_b32 v8, 31, {vL}")
    a(f"v_lshl_add_u32 v106, v8, 1, {t1}")
    a(f"v_lshl_add_u32 v107, {vG}, 3, {t1}")
    a(f"v_and_b32 v8, 1, {vG}")
    a(f"v_lshrrev_b32 v9, 2, {vJ}")
    a(f"v_lshl_add_u32 v10, v8, 2, v9")
    a(f"v_lshlrev_b32 v10, 5, v10")
    a(f"v_lshl_add_u32 v9, v8, 4, v9")
    a(f"v_lshrrev_b32 v8, 1, {vG}")
    a(f"v_lshl_add_u32 v9, v8, 2, v9")
    a(f"v_lshl_add_u32 v10, v9, 8, v10")
    a(f"v_and_b32 v8, 3, {vL}")
    a(f"v_lshl_add_u32 v108, v8, 3, v10")
    assert WUV == 0
    a(f"v_lshrrev_b32 v8, 2, {vJ}")
    a(f"v_lshlrev_b32 v8, 6, v8")
    a(f"v_lshl_add_u32 v109, {vG}, 4, v8")
    a(f"s_lshl_b32 {sT[12]}, {sH}, 3")
    a(f"s_add_u32 {sT[12]}, {sT[12]}, {sI}")
    a(f"s_lshl_b32 {sT[12]}, {sT[12]}, 10")
    a(f"s_lshl_b32 {t0}, {sW}, 8")
    a(f"s_add_u32 {sT[12]}, {sT[12]}, {t0}")
    a(f"s_add_u32 {sT[12]}, {sT[12]}, {H4}")
    a("s_waitcnt vmcnt(0)")
    g.stamp("ack3")
    def dma3():
        a(f"s_mov_b32 m0, {sT[11]}")
        a("s_nop 0")
        for i in range(4):
            a(f"buffer_load_dwordx4 v101, {sWS}, {sT[10]} offen offset:{i*1024} sc1 lds")
    dma3()
    a("s_barrier")
    n = 0
    for tp in range(8):
        a(f"v_xor_b32 v8, {tp*32}, v108")
        for u in range(2):
            for half in range(2):
                a(f"ds_read_b64_tr_b16 {ar((tp*2+u)*4+2*half,2)}, v8 offset:{u*8192+half*2048}")
                n += 1
        if tp % 2 == 1: a("s_waitcnt lgkmcnt(6)")
    a("C_LOOP:")
    a(f"v_cmp_ne_u32 vcc, {sT32}, v18")
    a("s_cbranch_vccnz C_STATS_BAD")
    a("v_mov_b32 v20, v16")
    g.wave_allreduce(["v20"], ["v21"], "v_max_f32", skip32=True)
    a("v_sub_f32 v16, v16, v20")
    a("v_exp_f32 v16, v16")
    a("v_mul_f32 v20, v16, v17")
    g.wave_allreduce(["v20"], ["v21"], "v_add_f32", skip32=True)
    a("v_rcp_f32 v20, v20")
    a("v_mul_f32 v16, v16, v20")
    a("v_cvt_pk_bf16_f32 v16, v16, v16")
    a("ds_write_b16 v106, v16")
    a("s_waitcnt lgkmcnt(0)")
    a("ds_read_b64 v[24:25], v107")
    a("ds_read_b64 v[26:27], v107 offset:32")
    a("C_HAVE:")
    a("s_waitcnt vmcnt(0)")
    for tau in range(4):
        a(f"ds_read_b64_tr_b16 {vr(32+4*tau,2)}, v{102+tau}")
        a(f"ds_read_b64_tr_b16 {vr(32+4*tau+2,2)}, v{102+tau} offset:2048")
    a("v_mov_b32 v20, 0")
    for tau in range(4):
        a(f"s_waitcnt lgkmcnt({2*(3-tau)})")
        a(f"v_mfma_f32_16x16x32_bf16 {vr(48+4*tau,4)}, {vr(32+4*tau,4)}, v[24:27], 0")
        for q in range(4):
            a(f"v_bitop3_b32 v20, v20, v{32+4*tau+q}, {vVM} bitop3:0xf6")
    g.tagcheck_end("v20", "C_PAY_BAD")
    g.stamp("h3")
    for tau in range(4):
        a(f"v_cvt_pk_bf16_f32 v{16+2*tau}, v{48+4*tau}, v{49+4*tau}")
        a(f"v_cvt_pk_bf16_f32 v{17+2*tau}, v{50+4*tau}, v{51+4*tau}")
    for u in range(2):
        for tp in range(8):
            c = "0" if u == 0 else vr(64+4*tp, 4)
            a(f"v_mfma_f32_16x16x32_bf16 {vr(64+4*tp,4)}, {ar((tp*2+u)*4,4)}, {vr(16+4*u,4)}, {c}")
    for tp in range(8):
        a(f"v_cvt_pk_bf16_f32 v{32+2*tp}, v{64+4*tp}, v{65+4*tp}")
        a(f"v_cvt_pk_bf16_f32 v{33+2*tp}, v{66+4*tp}, v{67+4*tp}")
    for kap in range(1, 4):
        for q in range(4):
            a(f"v_mov_b32_dpp v{32+q}, v{32+4*kap+q} quad_perm:[0,1,2,3] row_mask:0xf bank_mask:{hex(1<<kap)}")
    for q in range(4):
        a(f"v_bfi_b32 v{32+q}, {vC1}, {sM[q]}, v{32+q}")
    a("s_mov_b32 exec_lo, 0x11111111")
    a("s_mov_b32 exec_hi, 0x11111111")
    a(f"buffer_store_dwordx4 v[32:35], v109, {sWS}, {sT[12]} offen sc1")
    a("s_mov_b64 exec, -1")
    a("s_branch C_END")
    a("C_STATS_BAD:")
    g.spin_check()
    a(f"buffer_load_dwordx4 v[16:19], v100, {sWS}, {sT[9]} offen sc1")
    a("s_waitcnt vmcnt(0)")
    a("s_branch C_LOOP")
    a("C_PAY_BAD:")
    g.spin_check()
    dma3()
    a("s_branch C_HAVE")
    a("C_HI:")
    a("s_waitcnt vmcnt(2)")
    a("s_barrier")
    for n in range(4, 8): tail_dma(g, n)
    ffn_addr(g)
    ffn_dma(g)
    lab = a.label("CH")
    a(f"s_cmp_ge_u32 {sFS}, 86")
    a(f"s_cbranch_scc1 {lab}")
    a("s_waitcnt vmcnt(12)")
    a("s_barrier")
    a("s_branch D_HI")
    a(f"{lab}:")
    a("s_waitcnt vmcnt(0)")
    a("s_barrier")
    a("s_branch D_HI")
    a("C_END:")

def wo_frags(g):
    a = g.a
    a(f"s_lshl_b32 {sT[0]}, {sW}, 12")
    a(f"s_add_u32 {sT[0]}, {sT[0]}, {WO}")
    a(f"v_add_u32 v8, {sT[0]}, {vLIN8}")
    for k in range(4):
        a(f"ds_read_b64_tr_b16 {ar(64+4*k,2)}, v8 offset:{k*1024}")
        a(f"ds_read_b64_tr_b16 {ar(64+4*k+2,2)}, v8 offset:{k*1024+512}")

def ffn_addr(g):
    a = g.a
    a(f"v_lshrrev_b32 v8, 1, {vL}")
    a(f"v_mul_u32_u24 v8, 2752, v8")
    a(f"v_and_b32 v9, 1, {vL}")
    a(f"v_lshl_add_u32 v112, v9, 4, v8")
    a(f"v_lshlrev_b32 v113, 4, {vL}")

def ffn_dma(g):
    a = g.a
    t0, t1, t2 = sT[0], sT[1], sT[2]
    lab = a.label("NOFFN")
    a(f"s_cmp_ge_u32 {sFS}, 86")
    a(f"s_cbranch_scc1 {lab}")
    a(f"s_sub_u32 {t2}, {sW}, 4")
    a(f"s_mul_i32 {t0}, {t2}, {128*2752}")
    a(f"s_lshl_b32 {t1}, {sFS}, 5")
    a(f"s_add_u32 {t0}, {t0}, {t1}")
    a(f"s_lshl_b32 {t1}, {t2}, 12")
    a(f"s_add_u32 {t1}, {t1}, {WGI}")
    for nn in range(4):
        a(f"s_mov_b32 m0, {t1}")
        a("s_nop 0")
        a(f"buffer_load_dwordx4 v112, {sWG}, {t0} offen{g.nt} lds")
        a(f"s_add_u32 {sT[3]}, {t1}, {WUI-WGI}")
        a(f"s_mov_b32 m0, {sT[3]}")
        a(f"s_add_u32 {t1}, {t1}, 1024")
        a(f"buffer_load_dwordx4 v112, {sWU}, {t0} offen{g.nt} lds")
        a(f"s_add_u32 {t0}, {t0}, {32*2752}")
    a(f"s_lshl_b32 {t0}, {sFS}, 4")
    a(f"s_lshl_b32 {t1}, {t2}, 2")
    a(f"s_add_u32 {t0}, {t0}, {t1}")
    a(f"s_lshl_b32 {t0}, {t0}, 10")
    a(f"s_mul_i32 {t1}, {t1}, {KVP}")
    a(f"s_add_u32 {t1}, {t1}, {WDI}")
    for nn in range(4):
        a(f"s_mov_b32 m0, {t1}")
        a(f"s_add_u32 {t1}, {t1}, {KVP}")
        a(f"buffer_load_dwordx4 v113, {sWD}, {t0} offen{g.nt} lds")
        a(f"s_add_u32 {t0}, {t0}, 1024")
    a(f"{lab}:")

def phaseD(g):
    a = g.a
    t0, t1, t2 = sT[0], sT[1], sT[2]
    a(f"v_lshrrev_b32 v8, 2, {vJ}")
    a(f"v_lshlrev_b32 v8, 10, v8")
    a(f"v_and_b32 v9, 3, {vJ}")
    a(f"v_lshl_add_u32 v8, v9, 8, v8")
    a(f"v_lshl_add_u32 v100, {vG}, 4, v8")
    a(f"s_lshl_b32 {sT[9]}, {sHQ}, 2")
    a(f"s_add_u32 {sT[9]}, {sT[9]}, {sW}")
    a(f"s_lshl_b32 {sT[9]}, {sT[9]}, 13")
    a(f"s_add_u32 {sT[9]}, {sT[9]}, {H4}")
    a(f"s_add_u32 {sT[10]}, {sT[9]}, 4096")
    a(f"v_lshlrev_b32 v101, 5, {vJ}")
    a(f"v_lshl_add_u32 v101, {vG}, 3, v101")
    a(f"s_lshl_b32 {sT[11]}, {sMS}, 3")
    a(f"s_add_u32 {sT[11]}, {sT[11]}, {sHQ}")
    a(f"s_lshl_b32 {sT[11]}, {sT[11]}, 7")
    a(f"s_add_u32 {sT[11]}, {sT[11]}, {H56}")
    a("s_waitcnt vmcnt(0) lgkmcnt(0)")
    a("s_barrier")
    g.stamp("cd")
    def loads():
        for k in range(4):
            for ps in range(2):
                a(f"buffer_load_dwordx4 {vr(64+8*k+4*ps,4)}, v100, {sWS}, {sT[9+ps]} offen offset:{k*64} sc1")
    loads()
    wo_frags(g)
    a("D_WAIT:")
    a("v_mov_b32 v20, 0")
    a("s_waitcnt vmcnt(0) lgkmcnt(0)")
    for n in range(8):
        c = "0" if n == 0 else "v[16:19]"
        a(f"v_mfma_f32_16x16x32_bf16 v[16:19], {ar(64+4*(n>>1),4)}, {vr(64+4*n,4)}, {c}")
        for q in range(4):
            a(f"v_bitop3_b32 v20, v20, v{64+4*n+q}, {sM[q]} bitop3:0xf6")
    g.tagcheck_end("v20", "D_BAD")
    g.stamp("h4")
    for sh in (8, 4):
        for r in range(4):
            a(f"v_add_f32_dpp v{16+r}, v{16+r}, v{16+r} row_ror:{sh} row_mask:0xf bank_mask:0xf")
    a(f"ds_write_b128 {vRW}, v[16:19]")
    a("s_waitcnt lgkmcnt(0)")
    a("s_barrier")
    a(f"s_cmp_lg_u32 {sW}, 0")
    a("s_cbranch_scc1 D_END")
    a(f"ds_read_b128 v[16:19], {vRR}")
    a("s_waitcnt lgkmcnt(0)")
    for sh in (8, 4):
        for r in range(4):
            a(f"v_add_f32_dpp v{16+r}, v{16+r}, v{16+r} row_ror:{sh} row_mask:0xf bank_mask:0xf")
    a("s_mov_b32 exec_lo, 0x000f000f")
    a("s_mov_b32 exec_hi, 0x000f000f")
    a("v_cvt_pk_bf16_f32 v24, v16, v17")
    a("v_cvt_pk_bf16_f32 v25, v18, v19")
    a(f"v_bfi_b32 v24, {vC1}, {vMa}, v24")
    a(f"v_bfi_b32 v25, {vC1}, {vMb}, v25")
    a(f"buffer_store_dwordx2 v[24:25], v101, {sWS}, {sT[11]} offen sc1")
    a("s_mov_b64 exec, -1")
    a("s_branch D_END")
    a("D_BAD:")
    g.spin_check()
    loads()
    a("s_branch D_WAIT")
    a("D_HI:")
    a("s_barrier")
    a("D_END:")

def phaseE(g):
    a = g.a
    t0, t1, t2 = sT[0], sT[1], sT[2]
    a(f"s_cmp_ge_u32 {sFS}, 86")
    a("s_cbranch_scc1 FIN")
    a(f"v_and_b32 v8, 3, {vJ}")
    a(f"v_lshlrev_b32 v8, 10, v8")
    a(f"v_lshl_add_u32 v8, {vG}, 3, v8")
    a(f"s_lshl_b32 {t0}, {sW}, 7")
    a(f"v_add_u32 v8, {t0}, v8")
    for t in range(4):
        a(f"buffer_load_dwordx2 {vr(96+2*t,2)}, v8, {sX}, 0 offen offset:{t*32}")
    a(f"s_lshl_b32 {t0}, {sW}, 11")
    a(f"s_add_u32 {t0}, {t0}, {WGI}")
    a(f"v_add_u32 v119, {t0}, {vLIN8}")
    a(f"v_lshrrev_b32 v9, 2, {vJ}")
    a(f"v_lshl_add_u32 v9, {vG}, 2, v9")
    a(f"v_mul_u32_u24 v9, {KVP}, v9")
    a(f"v_and_b32 v10, 3, {vL}")
    a(f"v_lshl_add_u32 v9, v10, 3, v9")
    a(f"s_lshl_b32 {t0}, {sW}, 7")
    a(f"s_add_u32 {t0}, {t0}, {WDI}")
    a(f"v_add_u32 v120, {t0}, v9")
    a(f"v_and_b32 v8, 3, {vJ}")
    a(f"v_and_b32 v9, 1, v8")
    a(f"v_lshlrev_b32 v9, 4, v9")
    a(f"v_mov_b32 v10, 0x3f80")
    a(f"v_lshlrev_b32 v10, v9, v10")
    a(f"v_cmp_gt_u32 vcc, 2, v8")
    a(f"v_cndmask_b32 v104, 0, v10, vcc")
    a(f"v_cndmask_b32 v105, v10, 0, vcc")
    a(f"v_mov_b32 v106, v104")
    a(f"v_mov_b32 v107, v105")
    a(f"s_lshl_b32 {sT[9]}, {sW}, 12")
    a(f"s_add_u32 {sT[10]}, {sT[9]}, {ST56}")
    a(f"s_add_u32 {sT[9]}, {sT[9]}, {H56}")
    a(f"v_lshlrev_b32 v108, 4, {vL}")
    a(f"v_add_u32 v109, {sT[10]}, {vLIN8}")
    a(f"v_and_b32 v8, 3, {vJ}")
    a(f"v_lshlrev_b32 v8, 6, v8")
    a(f"s_lshl_b32 {t0}, {sW}, 3")
    a(f"s_add_u32 {t0}, {t0}, {MX}")
    a(f"v_add_u32 v110, {t0}, v8")
    a(f"v_lshrrev_b32 v9, 2, {vJ}")
    a(f"v_lshl_add_u32 v8, v9, 4, v8")
    a(f"v_add_u32 v111, {MX}, v8")
    a(f"v_and_b32 v8, 3, {vJ}")
    a(f"v_lshlrev_b32 v8, 7, v8")
    a(f"v_lshl_add_u32 v8, {vG}, 5, v8")
    a(f"s_lshl_b32 {t0}, {sW}, 9")
    a(f"s_add_u32 {t0}, {t0}, {RED}")
    a(f"v_add_u32 v112, {t0}, v8")
    a(f"v_lshrrev_b32 v9, 2, {vJ}")
    a(f"v_lshl_add_u32 v8, v9, 9, v8")
    a(f"v_add_u32 v113, {RED}, v8")
    a(f"v_and_b32 v8, 3, {vJ}")
    a(f"v_lshlrev_b32 v8, 11, v8")
    a(f"v_lshl_add_u32 v8, {vG}, 4, v8")
    a(f"s_lshl_b32 {t0}, {sW}, 8")
    a(f"s_add_u32 {t0}, {t0}, {HB}")
    a(f"v_add_u32 v117, {t0}, v8")
    a(f"v_lshrrev_b32 v8, 2, {vJ}")
    a(f"v_mul_u32_u24 v8, {86*128}, v8")
    a(f"v_and_b32 v9, 3, {vJ}")
    a(f"v_lshl_add_u32 v8, v9, 5, v8")
    a(f"v_lshl_add_u32 v118, {vG}, 3, v8")
    a(f"s_mul_i32 {sT[11]}, {sW}, {4*86*128}")
    a(f"s_lshl_b32 {t0}, {sFS}, 7")
    a(f"s_add_u32 {sT[11]}, {sT[11]}, {t0}")
    a(f"s_add_u32 {sT[11]}, {sT[11]}, {H7}")
    a("s_waitcnt vmcnt(0) lgkmcnt(0)")
    for t in range(4):
        for q in range(2):
            a(f"v_lshlrev_b32 v{80+4*t+2*q}, 16, v{96+2*t+q}")
            a(f"v_and_b32 v{81+4*t+2*q}, 0xffff0000, v{96+2*t+q}")
    a("s_barrier")
    g.stamp("dd")
    def dma56():
        a(f"s_mov_b32 m0, {sT[10]}")
        a("s_nop 0")
        for t in range(4):
            a(f"buffer_load_dwordx4 v108, {sWS}, {sT[9]} offen offset:{t*1024} sc1 lds")
    dma56()
    for X in range(2):
        for u in range(2):
            for hf in range(2):
                a(f"ds_read_b64_tr_b16 {ar((X*2+u)*4+2*hf,2)}, v119 offset:{X*(WUI-WGI)+u*1024+hf*512}")
    for t in range(4):
        a(f"ds_read_b64_tr_b16 {ar(16+2*t,2)}, v120 offset:{t*32}")
    a("E_WAIT:")
    a("s_waitcnt vmcnt(0) lgkmcnt(0)")
    for t in range(4):
        a(f"ds_read_b64_tr_b16 {vr(64+4*t,2)}, v109 offset:{t*1024}")
        a(f"ds_read_b64_tr_b16 {vr(64+4*t+2,2)}, v109 offset:{t*1024+512}")
    a("v_mov_b32 v20, 0")
    for t in range(4):
        a(f"s_waitcnt lgkmcnt({2*(3-t)})")
        a(f"v_mfma_f32_16x16x32_bf16 {vr(32+4*t,4)}, {vr(64+4*t,4)}, v[104:107], {vr(80+4*t,4)}")
        for q in range(4):
            a(f"v_bitop3_b32 v20, v20, v{64+4*t+q}, {vVM} bitop3:0xf6")
    g.tagcheck_end("v20", "E_BAD")
    g.stamp("h56")
    a("v_add_f32 v16, v32, v33")
    a("v_mul_f32 v17, v32, v32")
    a("v_fmac_f32 v17, v33, v33")
    for r in range(2, 16):
        a(f"v_add_f32 v16, v16, v{32+r}")
        a(f"v_fmac_f32 v17, v{32+r}, v{32+r}")
    g.cross_rows(["v16", "v17"], ["v18", "v19"], "v_add_f32")
    a("ds_write_b64 v110, v[16:17]")
    for t in range(4):
        a(f"ds_write_b128 v117, {vr(32+4*t,4)} offset:{t*64}")
    a("s_waitcnt lgkmcnt(4)")
    a("s_barrier")
    a("ds_read_b128 v[16:19], v111")
    a("s_waitcnt lgkmcnt(0)")
    a("v_add_f32 v16, v16, v18")
    a("v_add_f32 v17, v17, v19")
    for sh in (8, 4):
        for r in range(2):
            a(f"v_add_f32_dpp v{16+r}, v{16+r}, v{16+r} row_ror:{sh} row_mask:0xf bank_mask:0xf")
    a("v_mul_f32 v16, 0x3b000000, v16")
    a("v_mul_f32 v17, 0x3b000000, v17")
    a("v_fma_f32 v17, -v16, v16, v17")
    a("v_add_f32 v17, 0x3727c5ac, v17")
    a("v_rsq_f32 v17, v17")
    a("v_mul_f32 v16, v16, v17")
    for r in range(16):
        a(f"v_fma_f32 v{64+r}, v{32+r}, v17, -v16")
    for t in range(4):
        a(f"v_cvt_pk_bf16_f32 v{48+2*t}, v{64+4*t}, v{65+4*t}")
        a(f"v_cvt_pk_bf16_f32 v{49+2*t}, v{66+4*t}, v{67+4*t}")
    for u in range(2):
        for X in range(2):
            c = "0" if u == 0 else vr(56+4*X, 4)
            a(f"v_mfma_f32_16x16x32_bf16 {vr(56+4*X,4)}, {ar((X*2+u)*4,4)}, {vr(48+4*u,4)}, {c}")
    a("ds_write_b128 v112, v[56:59]")
    a("ds_write_b128 v112, v[60:63] offset:16")
    a("s_waitcnt lgkmcnt(0)")
    a("s_barrier")
    a("ds_read_b128 v[64:67], v113")
    a("ds_read_b128 v[68:71], v113 offset:16")
    a("ds_read_b128 v[72:75], v113 offset:2048")
    a("ds_read_b128 v[76:79], v113 offset:2064")
    a("s_waitcnt lgkmcnt(0)")
    for r in range(8): a(f"v_add_f32 v{64+r}, v{64+r}, v{72+r}")
    for sh in (8, 4):
        for r in range(8):
            a(f"v_add_f32_dpp v{64+r}, v{64+r}, v{64+r} row_ror:{sh} row_mask:0xf bank_mask:0xf")
    for r in range(4): a(f"v_max_f32 v{64+r}, 0, v{64+r}")
    for r in range(4): a(f"v_mul_f32 v{64+r}, v{64+r}, v{68+r}")
    a("v_cvt_pk_bf16_f32 v16, v64, v65")
    a("v_cvt_pk_bf16_f32 v17, v66, v67")
    for t in range(4):
        a(f"v_mfma_f32_16x16x16_bf16 {vr(32+4*t,4)}, {ar(16+2*t,2)}, v[16:17], 0")
    for t in range(4):
        a(f"v_cvt_pk_bf16_f32 v{48+2*t}, v{32+4*t}, v{33+4*t}")
        a(f"v_cvt_pk_bf16_f32 v{49+2*t}, v{34+4*t}, v{35+4*t}")
    for t in range(1, 4):
        for q in range(2):
            a(f"v_mov_b32_dpp v{48+q}, v{48+2*t+q} quad_perm:[0,1,2,3] row_mask:0xf bank_mask:{hex(1<<t)}")
    a(f"v_bfi_b32 v48, {vC1}, {vMa}, v48")
    a(f"v_bfi_b32 v49, {vC1}, {vMb}, v49")
    a(f"buffer_store_dwordx2 v[48:49], v118, {sWS}, {sT[11]} offen sc1")
    a("s_branch E_END")
    a("E_BAD:")
    g.spin_check()
    dma56()
    a("s_branch E_WAIT")
    a("E_END:")

def phaseF(g):
    a = g.a
    t0, t1, t2 = sT[0], sT[1], sT[2]
    a(f"s_cmp_ge_u32 {sFS}, 32")
    a("s_cbranch_scc1 FIN")
    for k, add in ((0, 0), (1, 64)):
        a(f"s_lshl_b32 {t0}, {sW}, 3")
        a(f"s_add_u32 {t0}, {t0}, {add}")
        a(f"v_lshrrev_b32 v8, 3, {vL}")
        a(f"v_add_u32 v8, {t0}, v8")
        a(f"v_min_u32 v8, 85, v8")
        a(f"v_and_b32 v9, 7, {vL}")
        a(f"v_lshlrev_b32 v9, 4, v9")
        a(f"v_lshl_add_u32 v{96+k}, v8, 7, v9")
    a(f"s_mul_i32 {sT[9]}, {sFS}, {86*128}")
    a(f"s_add_u32 {sT[9]}, {sT[9]}, {H7}")
    a(f"s_lshl_b32 {sT[10]}, {sW}, 10")
    a(f"s_add_u32 {sT[10]}, {sT[10]}, {ST7}")
    a(f"v_add_u32 v98, {sT[10]}, {vLIN8}")
    a(f"v_mov_b32 v100, v104"); a(f"v_mov_b32 v101, v105")
    a(f"s_cmp_eq_u32 {sW}, 2")
    a(f"s_cselect_b32 {t0}, 2, 4")
    a(f"v_cmp_gt_u32 vcc, {t0}, {vG}")
    a(f"v_cndmask_b32 v102, 0, v104, vcc")
    a(f"v_cndmask_b32 v103, 0, v105, vcc")
    a(f"v_and_b32 v8, 3, {vJ}")
    a(f"v_lshlrev_b32 v9, 11, v8")
    a(f"v_lshl_add_u32 v9, {vG}, 4, v9")
    a(f"s_lshl_b32 {t0}, {sFS}, 6")
    a(f"s_add_u32 {t0}, {t0}, {HB}")
    a(f"v_add_u32 v99, {t0}, v9")
    a(f"v_lshlrev_b32 v9, 10, v8")
    a(f"v_lshl_add_u32 v9, {vG}, 3, v9")
    a(f"s_lshl_b32 {t0}, {sFS}, 5")
    a(f"v_add_u32 v108, {t0}, v9")
    a("s_waitcnt vmcnt(0)")
    a("s_barrier")
    g.stamp("ed")
    a("F_RETRY:")
    a(f"s_mov_b32 m0, {sT[10]}")
    a("s_nop 0")
    a(f"buffer_load_dwordx4 v96, {sWS}, {sT[9]} offen sc1 lds")
    lab = a.label("F1")
    a(f"s_cmp_ge_u32 {sW}, 3")
    a(f"s_cbranch_scc1 {lab}")
    a(f"s_add_u32 {t0}, {sT[10]}, 8192")
    a(f"s_mov_b32 m0, {t0}")
    a("s_nop 0")
    a(f"buffer_load_dwordx4 v97, {sWS}, {sT[9]} offen sc1 lds")
    a(f"{lab}:")
    a("v_mov_b32 v20, 0")
    a("s_waitcnt vmcnt(0)")
    a("ds_read_b64_tr_b16 v[64:65], v98")
    a("ds_read_b64_tr_b16 v[66:67], v98 offset:512")
    a("s_waitcnt lgkmcnt(0)")
    a("v_mfma_f32_16x16x32_bf16 v[16:19], v[64:67], v[104:107], 0")
    for q in range(4):
        a(f"v_bitop3_b32 v20, v20, v{64+q}, {vVM} bitop3:0xf6")
    lab2 = a.label("F2")
    a(f"s_cmp_ge_u32 {sW}, 3")
    a(f"s_cbranch_scc1 {lab2}")
    a("ds_read_b64_tr_b16 v[68:69], v98 offset:8192")
    a("ds_read_b64_tr_b16 v[70:71], v98 offset:8704")
    a("s_waitcnt lgkmcnt(0)")
    a("v_mfma_f32_16x16x32_bf16 v[16:19], v[68:71], v[100:103], v[16:19]")
    for q in range(4):
        a(f"v_bitop3_b32 v20, v20, v{68+q}, {vVM} bitop3:0xf6")
    a(f"{lab2}:")
    g.tagcheck_end("v20", "F_BAD")
    a("s_nop 7")
    a(f"ds_write_b128 {vRW}, v[16:19]")
    a("s_waitcnt lgkmcnt(0)")
    a("s_barrier")
    a(f"s_cmp_lg_u32 {sW}, 0")
    a("s_cbranch_scc1 FIN")
    a("ds_read_b128 v[24:27], v99")
    red_final(g, vRR, 16)
    for r in range(4): a(f"v_add_f32 v{16+r}, v{16+r}, v{24+r}")
    a("v_cvt_pk_bf16_f32 v24, v16, v17")
    a("v_cvt_pk_bf16_f32 v25, v18, v19")
    a("s_mov_b32 exec_lo, 0x000f000f")
    a("s_mov_b32 exec_hi, 0x000f000f")
    a(f"buffer_store_dwordx2 v[24:25], v108, {sOUT}, 0 offen")
    a("s_mov_b64 exec, -1")
    lab3 = a.label("F3")
    a(f"s_cmp_lg_u32 {sFS}, 0")
    a(f"s_cbranch_scc1 {lab3}")
    a(f"s_add_u32 {t0}, {sE}, 1")
    a(f"v_mov_b32 v8, {t0}")
    a("v_mov_b32 v9, 0")
    a("s_mov_b64 exec, 1")
    a(f"buffer_store_dword v8, v9, {sWS}, 0 offen sc1")
    a("s_mov_b64 exec, -1")
    a(f"{lab3}:")
    a("s_branch FIN")
    a("F_BAD:")
    g.spin_check()
    a("s_branch F_RETRY")

def rest(g):
    a = g.a
    phaseB(g)
    def stop_here():
        a("s_waitcnt vmcnt(0)")
        a("s_branch FIN")
    if g.stop <= 3: stop_here()
    else:
        phaseC(g)
        if g.stop <= 4: stop_here()
        else:
            phaseD(g)
            if g.stop <= 5: stop_here()
            else:
                phaseE(g)
                if g.stop <= 6: stop_here()
                else:
                    phaseF(g)
    q_retry(g)
    g.loader()
    g.finish()
```

```python
import sys, math
sys.path.insert(0, 'gen')
from asmgen import Asm

KNAME = "sequential_preLN__compressed_kv_cla__glu_gated_reglu__decode_kernel"

WS_EPOCH = 0
H1   = 0x10000
H2   = 0x30000
STATS= 0x50000
H4   = 0x60000
H56  = 0xA0000
H7   = 0xB0000
H3   = 0x200000
DBGT = 0x800000
WS_BYTES = 268435456

KVP = 1056
QS   = 135168
XN   = QS + 16384
PB   = XN + 4352
MX   = PB + 4096
LS   = MX + 512
VD   = LS + 512
FLAG = VD + 32
AL   = FLAG + 32
LDS_BYTES = 163840
assert AL + 256 <= LDS_BYTES
WUV = 0; WO = 16384; WGI = 32768; WUI = 49152; WDI = 65536
ST3 = 82432; ST56 = 98816; ST7 = ST3
HB = QS
RED = PB

sX, sCKV, sWQ, sWUK, sWUV, sWO, sWG, sWU, sWD, sOUT, sWS = [f"s[{4*i}:{4*i+3}]" for i in range(1, 12)]
sW = "s48"; sE = "s49"; sM = ["s50", "s51", "s52", "s53"]; sT32 = "s54"
sH = "s55"; sI = "s56"; sB = "s57"; sHG = "s58"; sKC = "s59"; sCH = "s60"; sMS = "s61"; sHQ = "s62"; sFS = "s63"
sT = [f"s{i}" for i in range(64, 78)]
sCNT = "s78"; sAD = "s79"

vL, vJ, vG = "v1", "v2", "v3"
vVM, vMa, vMb, vC1 = "v4", "v5", "v6", "v7"

def vr(a, n=1):
    return f"v{a}" if n == 1 else f"v[{a}:{a+n-1}]"
def ar(a, n=1):
    return f"a{a}" if n == 1 else f"a[{a}:{a+n-1}]"

class Gen:
    def __init__(self, stop=99, stamps=False, nt=True, TH=8, N1=8, spin=400000):
        self.a = Asm(); self.stop = stop; self.stamps = stamps
        self.nt = " nt" if nt else ""
        self.TH = TH; self.N1 = N1; self.spin = spin
        self.nstamp = 0

    def stamp(self, name):
        if not self.stamps or name not in self.stamps: return
        idx = self.stamps.index(name)
        a = self.a
        a(f"s_memrealtime s[{80+2*idx}:{81+2*idx}]")
        a("s_waitcnt lgkmcnt(0)")

    def spin_check(self, fail_label="FAIL"):
        a = self.a
        a(f"s_add_u32 {sCNT}, {sCNT}, 1")
        a(f"s_cmp_gt_u32 {sCNT}, {self.spin}" if self.spin < 65536 else f"s_cmp_gt_u32 {sCNT}, {hex(self.spin)}")
        a(f"s_cbranch_scc1 {fail_label}")

    def tagcheck_end(self, acc, retry_label):
        a = self.a
        a(f"v_and_b32 {acc}, {vC1}, {acc}")
        a(f"v_cmp_ne_u32 vcc, 0, {acc}")
        a(f"s_cbranch_vccnz {retry_label}")

    def wave_allreduce(self, regs, tmps, op, rows_only=False, skip32=False):
        a = self.a
        for sh in (1, 2, 4, 8):
            for r in regs:
                a(f"{op}_dpp {r}, {r}, {r} row_ror:{sh} row_mask:0xf bank_mask:0xf")
        self.cross_rows(regs, tmps, op, skip32)

    def cross_rows(self, regs, tmps, op, skip32=False):
        a = self.a
        for r, t in zip(regs, tmps):
            a(f"v_mov_b32 {t}, {r}")
        for r, t in zip(regs, tmps):
            a(f"v_permlane16_swap_b32 {t}, {r}")
        for r, t in zip(regs, tmps):
            a(f"{op} {r}, {r}, {t}")
        if skip32: return
        for r, t in zip(regs, tmps):
            a(f"v_mov_b32 {t}, {r}")
        for r, t in zip(regs, tmps):
            a(f"v_permlane32_swap_b32 {t}, {r}")
        for r, t in zip(regs, tmps):
            a(f"{op} {r}, {r}, {t}")

    def prologue(self):
        a = self.a
        a("s_cmp_ge_u32 s2, 256")
        a("s_cbranch_scc1 END")
        for i, off in enumerate([0, 8, 16, 24, 32, 40, 56, 64, 72, 80, 96]):
            a(f"s_load_dwordx2 s[{4*(i+1)}:{4*(i+1)+1}], s[0:1], {off}")
        sizes = [4096, 16777216, 4194304, 4194304, 4194304, 4194304, 1409024, 1409024, 1409024, 4096, WS_BYTES]
        for i, sz in enumerate(sizes):
            a(f"s_mov_b32 s{4*(i+1)+2}, {hex(sz)}")
            a(f"s_mov_b32 s{4*(i+1)+3}, 0x20000")
        a(f"v_readfirstlane_b32 {sW}, v0")
        a(f"v_and_b32 {vL}, 63, v0")
        a(f"v_and_b32 {vJ}, 15, v0")
        a(f"s_lshr_b32 {sW}, {sW}, 6")
        a(f"v_lshrrev_b32 {vG}, 4, {vL}")
        a(f"v_mov_b32 {vC1}, 0x10001")
        for r_ in (14, 15, 112, 113):
            a(f"v_mov_b32 v{r_}, 0")
        t0, t1 = sT[0], sT[1]
        a(f"s_and_b32 {t0}, s2, 7")
        a(f"s_lshr_b32 {t1}, s2, 3")
        a(f"s_and_b32 {sH}, {t1}, 3")
        a(f"s_lshl_b32 {sH}, {sH}, 3")
        a(f"s_add_u32 {sH}, {sH}, {t0}")
        a(f"s_lshr_b32 {sI}, {t1}, 2")
        a(f"s_and_b32 {sHG}, {t1}, 1")
        a(f"s_lshr_b32 {sCH}, {t1}, 1")
        a(f"s_lshl_b32 {sCH}, {sCH}, 3")
        a(f"s_add_u32 {sCH}, {sCH}, {t0}")
        a(f"s_lshr_b32 {sB}, {sCH}, 5")
        a(f"s_and_b32 {sKC}, {sCH}, 31")
        a(f"s_and_b32 {sMS}, {t1}, 3")
        a(f"s_lshl_b32 {sT[2]}, {t0}, 2")
        a(f"s_add_u32 {sMS}, {sMS}, {sT[2]}")
        a(f"s_lshr_b32 {sHQ}, {t1}, 2")
        a(f"s_lshl_b32 {sFS}, {sHQ}, 3")
        a(f"s_add_u32 {sFS}, {sFS}, {t0}")
        a(f"s_lshl_b32 {sFS}, {sFS}, 2")
        a(f"s_and_b32 {sT[2]}, {t1}, 3")
        a(f"s_add_u32 {sFS}, {sFS}, {sT[2]}")
        a(f"s_mov_b32 {sCNT}, 0")
        a(f"s_mov_b32 {sAD}, 0")
        a("s_waitcnt lgkmcnt(0)")
        a(f"s_load_dword {sE}, s[44:45], {WS_EPOCH}")
        self.stamp_noW(0)
        a(f"s_cmp_ge_u32 {sW}, 4")
        a("s_cbranch_scc1 LOADER")

    def stamp_noW(self, idx):
        if not self.stamps: return
        self.a(f"s_memrealtime s[80:81]")
        for i in range(1, 10):
            self.a(f"s_mov_b64 s[{80+2*i}:{81+2*i}], 0")

    def tags(self):
        a = self.a
        t0, t1 = sT[0], sT[1]
        a(f"s_and_b32 {sM[0]}, {sE}, 1")
        a(f"s_bfe_u32 {t0}, {sE}, 0x10001")
        a(f"s_lshl_b32 {t0}, {t0}, 16")
        a(f"s_or_b32 {sM[0]}, {sM[0]}, {t0}")
        a(f"s_bfe_u32 {sM[1]}, {sE}, 0x10002")
        a(f"s_bfe_u32 {t0}, {sE}, 0x10003")
        a(f"s_lshl_b32 {t0}, {t0}, 16")
        a(f"s_or_b32 {sM[1]}, {sM[1]}, {t0}")
        a(f"s_xor_b32 {sM[2]}, {sM[0]}, 0x10001")
        a(f"s_xor_b32 {sM[3]}, {sM[1]}, 0x10001")
        a(f"s_mul_i32 {sT32}, {sE}, 0x9e3779b1")
        a(f"s_add_u32 {sT32}, {sT32}, 0x7f4a7c15")
        a(f"v_and_b32 v8, 1, {vG}")
        a(f"v_cmp_ne_u32 vcc, 0, v8")
        a(f"v_mov_b32 v9, {sM[0]}")
        a(f"v_mov_b32 v10, {sM[2]}")
        a(f"v_cndmask_b32 {vMa}, v9, v10, vcc")
        a(f"v_mov_b32 v11, {sM[1]}")
        a(f"v_mov_b32 v12, {sM[3]}")
        a(f"v_cndmask_b32 {vMb}, v11, v12, vcc")
        a(f"v_and_b32 v8, 2, {vL}")
        a(f"v_cmp_ne_u32 vcc, 0, v8")
        a(f"v_cndmask_b32 v13, v9, v11, vcc")
        a(f"v_cndmask_b32 v14, v10, v12, vcc")
        a(f"v_and_b32 v8, 4, {vL}")
        a(f"v_cmp_ne_u32 vcc, 0, v8")
        a(f"v_cndmask_b32 v13, v13, v14, vcc")
        a(f"v_and_b32 v8, 1, {vL}")
        a(f"v_lshlrev_b32 v8, 4, v8")
        a(f"v_lshrrev_b32 v13, v8, v13")
        a(f"v_and_b32 v13, 1, v13")
        a(f"v_mul_u32_u24 {vVM}, {vC1}, v13")

    def loader(self):
        a = self.a
        a("LOADER:")
        t0, sM0, sOff = sT[0], sT[1], sT[2]
        a(f"s_sub_u32 {t0}, {sW}, 4")
        a(f"s_lshl_b32 {t0}, {t0}, 5")
        a(f"s_mul_i32 {sM0}, {t0}, {KVP}")
        a(f"s_lshl_b32 {sOff}, {t0}, 10")
        a(f"s_lshl_b32 {t0}, {sCH}, 17")
        a(f"s_add_u32 {sOff}, {sOff}, {t0}")
        a(f"v_lshlrev_b32 v8, 4, {vL}")
        a("s_barrier")
        for n in range(32):
            a(f"s_mov_b32 m0, {sM0}")
            a(f"s_add_u32 {sM0}, {sM0}, {KVP}")
            a(f"buffer_load_dwordx4 v8, {sCKV}, {sOff} offen{self.nt} lds")
            a(f"s_add_u32 {sOff}, {sOff}, 1024")
            if n >= self.TH and n < 31:
                a(f"s_waitcnt vmcnt({self.TH})")
        a("s_waitcnt lgkmcnt(0)")
        self.tags()
        self.b_hook()
        if self.stop > 2:
            from gen_rest import tail_dma_addr
            tail_dma_addr(self)
        a("s_waitcnt vmcnt(0)")
        self.stamp("ckv")
        a("s_branch JOIN_X1")

    def phaseA(self):
        a = self.a
        nt = self.nt
        t0, t1, t2 = sT[0], sT[1], sT[2]
        a(f"v_lshlrev_b32 v8, 4, v0")
        a(f"buffer_load_dwordx4 v[16:19], v8, {sX}, 0 offen")
        a(f"v_lshrrev_b32 v9, 3, {vL}")
        a(f"v_lshlrev_b32 v9, 13, v9")
        a(f"v_bfe_u32 v10, {vL}, 1, 2")
        a(f"v_xor_b32 v10, v10, {vG}")
        a(f"v_lshl_add_u32 v9, v10, 5, v9")
        a(f"v_and_b32 v10, 1, {vL}")
        a(f"v_lshl_add_u32 v9, v10, 4, v9")
        a(f"s_lshr_b32 {t0}, {sI}, 1")
        a(f"s_lshl_b32 {t0}, {t0}, 20")
        a(f"s_lshl_b32 {t1}, {sW}, 18")
        a(f"s_add_u32 {t0}, {t0}, {t1}")
        a(f"s_lshl_b32 {t1}, {sH}, 8")
        a(f"s_add_u32 {t0}, {t0}, {t1}")
        a(f"s_and_b32 {t1}, {sI}, 1")
        a(f"s_lshl_b32 {t1}, {t1}, 7")
        a(f"s_add_u32 {t0}, {t0}, {t1}")
        a(f"s_lshl_b32 {t2}, {sW}, 12")
        a(f"s_add_u32 {t2}, {t2}, {QS}")
        for n in range(4):
            a(f"s_mov_b32 m0, {t2}")
            a(f"s_add_u32 {t2}, {t2}, 1024")
            a(f"buffer_load_dwordx4 v9, {sWQ}, {t0} offen{nt} lds")
            if n < 3: a(f"s_add_u32 {t0}, {t0}, 65536")
        a(f"v_mov_b32 v12, {FLAG}")
        a("v_mov_b32 v20, 0"); a("v_mov_b32 v21, 0"); a("v_mov_b32 v22, 0"); a("v_mov_b32 v23, 0")
        a("ds_write_b128 v12, v[20:23]")
        a("ds_write_b32 v12, v20 offset:16")
        a("s_waitcnt lgkmcnt(0)")
        a("s_barrier")
        a(f"v_lshrrev_b32 v10, 2, {vL}")
        a(f"v_lshlrev_b32 v10, 6, v10")
        a(f"v_and_b32 v11, 1, {vL}")
        a(f"v_lshl_add_u32 v10, v11, 5, v10")
        a(f"v_bfe_u32 v11, {vL}, 1, 1")
        a(f"v_lshl_add_u32 v10, v11, 3, v10")
        a(f"s_mul_i32 {t1}, {sW}, 1088")
        a(f"s_add_u32 {t1}, {t1}, {XN}")
        a(f"v_add_u32 v10, {t1}, v10")
        a(f"v_bfe_u32 v11, {vJ}, 2, 2")
        a(f"v_lshl_add_u32 v11, {vG}, 2, v11")
        a(f"v_bfe_u32 v13, v11, 1, 2")
        a(f"v_xor_b32 v13, {sW}, v13")
        a(f"v_lshlrev_b32 v13, 5, v13")
        a(f"v_lshl_add_u32 v8, v11, 7, v13")
        a(f"v_and_b32 v13, 3, {vL}")
        a(f"v_lshl_add_u32 v8, v13, 3, v8")
        a(f"v_add_u32 v8, {QS}, v8")
        a(f"v_and_b32 v9, 3, {vJ}")
        a(f"v_mul_u32_u24 v9, 1088, v9")
        a(f"v_lshl_add_u32 v9, {vG}, 4, v9")
        a(f"s_lshr_b32 {t1}, {sI}, 1")
        a(f"s_lshl_b32 {t1}, {t1}, 8")
        a(f"s_add_u32 {t1}, {t1}, {XN}")
        a(f"v_add_u32 v9, {t1}, v9")
        t3 = sT[5]
        a(f"v_lshlrev_b32 v14, 5, {vJ}")
        a(f"v_lshl_add_u32 v14, {vG}, 3, v14")
        a(f"s_lshl_b32 {t3}, {sH}, 3")
        a(f"s_and_b32 {t1}, {sI}, 1")
        a(f"s_lshl_b32 {t1}, {t1}, 2")
        a(f"s_add_u32 {t3}, {t3}, {t1}")
        a(f"s_lshr_b32 {t1}, {sI}, 1")
        a(f"s_add_u32 {t3}, {t3}, {t1}")
        a(f"s_lshl_b32 {t3}, {t3}, 2")
        a(f"s_add_u32 {t3}, {t3}, {sW}")
        a(f"s_lshl_b32 {t3}, {t3}, 7")
        a(f"s_add_u32 {t3}, {t3}, {H1}")
        scale = (128 ** -0.5) * math.log2(math.e)
        import struct
        sc = struct.unpack("<I", struct.pack("<f", scale))[0]
        a(f"v_mov_b32 v15, {hex(sc)}")
        a("s_waitcnt vmcnt(4)")
        self.stamp("xl")
        for k in range(4):
            a(f"v_lshlrev_b32 v{20+2*k}, 16, v{16+k}")
            a(f"v_and_b32 v{21+2*k}, 0xffff0000, v{16+k}")
        a("v_add_f32 v28, v20, v21")
        a("v_mul_f32 v29, v20, v20")
        a("v_fmac_f32 v29, v21, v21")
        for k in range(2, 8):
            a(f"v_add_f32 v28, v28, v{20+k}")
            a(f"v_fmac_f32 v29, v{20+k}, v{20+k}")
        self.wave_allreduce(["v28", "v29"], ["v30", "v31"], "v_add_f32")
        a("v_mul_f32 v28, 0x3b000000, v28")
        a("v_mul_f32 v29, 0x3b000000, v29")
        a("v_fma_f32 v29, -v28, v28, v29")
        a("v_add_f32 v29, 0x3727c5ac, v29")
        a("v_rsq_f32 v29, v29")
        a("v_mul_f32 v28, v28, v29")
        for k in range(8):
            a(f"v_fma_f32 v{20+k}, v{20+k}, v29, -v28")
        for k in range(4):
            a(f"v_cvt_pk_bf16_f32 v{16+k}, v{20+2*k}, v{21+2*k}")
        a("ds_write_b64 v10, v[16:17]")
        a("ds_write_b64 v10, v[18:19] offset:16")
        a("s_waitcnt lgkmcnt(0)")
        a(f"v_mov_b32 v32, v8"); a(f"v_mov_b32 v33, v9"); a("v_mov_b32 v34, v14")
        self.tags()
        a(f"s_lshl_b32 {t1}, {sW}, 2")
        a(f"s_add_u32 {t1}, {t1}, {FLAG}")
        a(f"v_mov_b32 v12, {t1}")
        a(f"v_mov_b32 v13, 1")
        a(f"v_mov_b32 v11, {FLAG}")
        self.stamp("ln")
        a("s_waitcnt vmcnt(0)")
        a("ds_write_b32 v12, v13")
        self.stamp("wq")
        a("A_RDY:")
        a("ds_read_b128 v[16:19], v11")
        self.spin_check()
        a("s_waitcnt lgkmcnt(0)")
        a("v_and_b32 v16, v16, v17")
        a("v_and_b32 v18, v18, v19")
        a("v_and_b32 v16, v16, v18")
        a("v_cmp_eq_u32 vcc, 0, v16")
        a("s_cbranch_vccnz A_RDY")
        self.stamp("rdy")
        for s_ in range(4):
            a(f"ds_read_b64_tr_b16 {vr(64+4*s_,2)}, v32 offset:{s_*4096}")
            a(f"ds_read_b64_tr_b16 {vr(64+4*s_+2,2)}, v32 offset:{s_*4096+2048}")
            a(f"ds_read_b128 {vr(80+4*s_,4)}, v33 offset:{s_*64}")
        for s_ in range(4):
            a(f"s_waitcnt lgkmcnt({3*(3-s_)})")
            c = "0" if s_ == 0 else "v[16:19]"
            a(f"v_mfma_f32_16x16x32_bf16 v[16:19], {vr(64+4*s_,4)}, {vr(80+4*s_,4)}, {c}")
        a("s_mov_b32 exec_lo, 0x000f000f")
        a("s_mov_b32 exec_hi, 0x000f000f")
        for r in range(4):
            a(f"v_mul_f32 v{16+r}, v{16+r}, v15")
        a("v_cvt_pk_bf16_f32 v20, v16, v17")
        a("v_cvt_pk_bf16_f32 v21, v18, v19")
        a(f"v_bfi_b32 v20, {vC1}, {vMa}, v20")
        a(f"v_bfi_b32 v21, {vC1}, {vMb}, v21")
        a(f"buffer_store_dwordx2 v[20:21], v34, {sWS}, {t3} offen sc1")
        a("s_mov_b64 exec, -1")
        self.stamp("a1")
        a(f"s_cmp_lg_u32 {sW}, 0")
        a("s_cbranch_scc1 A_HELP")
        a(f"v_lshrrev_b32 v11, 2, {vJ}")
        a(f"v_lshlrev_b32 v11, 3, v11")
        a(f"v_and_b32 v12, 3, {vJ}")
        a(f"v_add_u32 v11, v11, v12")
        a(f"v_lshlrev_b32 v11, 13, v11")
        a(f"v_lshl_add_u32 v11, {vG}, 4, v11")
        a(f"s_lshl_b32 {t2}, {sI}, 19")
        a(f"s_lshl_b32 {t1}, {sH}, 8")
        a(f"s_add_u32 {t2}, {t2}, {t1}")
        for t in range(4):
            a(f"s_add_u32 {t1}, {t2}, {(32*(t>>1)+4*(t&1))*8192}")
            for k in range(4):
                a(f"buffer_load_dwordx4 {ar((t*4+k)*4,4)}, v11, {sWUK}, {t1} offen offset:{k*64}{nt}")
        a(f"v_lshrrev_b32 v10, 2, {vJ}")
        a(f"v_lshlrev_b32 v10, 9, v10")
        a(f"v_lshrrev_b32 v11, 1, {vG}")
        a(f"v_lshl_add_u32 v10, v11, 7, v10")
        a(f"v_and_b32 v11, 3, {vJ}")
        a(f"v_lshl_add_u32 v10, v11, 5, v10")
        a(f"v_and_b32 v11, 1, {vG}")
        a(f"v_lshl_add_u32 v10, v11, 4, v10")
        a(f"s_lshl_b32 {t0}, {sH}, 12")
        a(f"s_add_u32 {t0}, {t0}, {H1}")
        a(f"v_and_b32 v9, 3, {vJ}")
        a(f"v_lshlrev_b32 v9, 15, v9")
        a(f"v_bfe_u32 v11, {vJ}, 2, 1")
        a(f"v_lshl_add_u32 v9, v11, 6, v9")
        a(f"v_lshl_add_u32 v9, {vG}, 4, v9")
        a(f"s_lshl_b32 {t2}, {sH}, 3")
        a(f"s_add_u32 {t2}, {t2}, {sI}")
        a(f"s_lshl_b32 {t2}, {t2}, 7")
        a(f"s_add_u32 {t2}, {t2}, {H2}")
        a(f"v_mov_b32 v13, 1")
        a(f"v_mov_b32 v8, {FLAG+16}")
        a("s_waitcnt vmcnt(16)")
        self.stamp("ack1")
        a("H1_RETRY:")
        for k in range(4):
            a(f"buffer_load_dwordx4 {vr(64+4*k,4)}, v10, {sWS}, {t0} offen offset:{(k>>1)*2048+(k&1)*256} sc1")
        self.spin_check()
        a("v_mov_b32 v12, 0")
        a("s_waitcnt vmcnt(0)")
        for k in range(4):
            for q in range(4):
                a(f"v_bitop3_b32 v12, v12, v{64+4*k+q}, {sM[q]} bitop3:0xf6")
        self.tagcheck_end("v12", "H1_RETRY")
        self.stamp("h1")
        for k in range(4):
            for t in range(4):
                c = "0" if k == 0 else vr(20+4*t, 4)
                a(f"v_mfma_f32_16x16x32_bf16 {vr(20+4*t,4)}, {ar((t*4+k)*4,4)}, {vr(64+4*k,4)}, {c}")
        for r in range(16):
            a(f"v_add_f32_dpp v{20+r}, v{20+r}, v{20+r} row_ror:8 row_mask:0xf bank_mask:0xf")
        for r in range(8):
            a(f"v_add_f32_dpp v{36+r}, v{20+r}, v{20+r} row_ror:12 row_mask:0xf bank_mask:0xf")
        for r in range(8):
            a(f"v_add_f32_dpp v{36+r}, v{28+r}, v{28+r} row_ror:4 row_mask:0xf bank_mask:0x2")
        for q in range(4):
            a(f"v_cvt_pk_bf16_f32 v{44+q}, v{36+2*q}, v{37+2*q}")
        for q in range(4):
            a(f"v_bfi_b32 v{44+q}, {vC1}, {sM[q]}, v{44+q}")
        a("s_mov_b32 exec_lo, 0x00ff00ff")
        a("s_mov_b32 exec_hi, 0x00ff00ff")
        a(f"buffer_store_dwordx4 v[44:47], v9, {sWS}, {t2} offen sc1")
        a("s_mov_b64 exec, -1")
        self.h2_addr()
        self.b_hook()
        a("s_waitcnt vmcnt(0)")
        a(f"v_mov_b32 v8, {FLAG+16}")
        a("ds_write_b32 v8, v13")
        self.stamp("h2pub")
        a("s_branch H2_ISSUE")
        a("A_HELP:")
        self.b_hook()
        self.h2_addr()
        a(f"v_mov_b32 v12, {FLAG+16}")
        a("A_SPIN:")
        a("ds_read_b32 v13, v12")
        self.spin_check()
        a("s_waitcnt lgkmcnt(0)")
        a("v_cmp_eq_u32 vcc, 0, v13")
        a("s_cbranch_vccnz A_SPIN")
        a("H2_ISSUE:")
        self.h2_issue()
        a("JOIN_X1:")

    def b_hook(self):
        if self.stop > 2:
            from gen_rest import b_addr
            b_addr(self)

    def h2_addr(self):
        a = self.a
        a(f"v_lshrrev_b32 v8, 3, {vL}")
        a(f"v_lshlrev_b32 v8, 10, v8")
        a(f"v_and_b32 v9, 7, {vL}")
        a(f"v_xor_b32 v9, v9, {vG}")
        a(f"v_lshl_add_u32 v14, v9, 4, v8")
        a(f"v_xor_b32 v9, 4, v9")
        a(f"v_lshl_add_u32 v15, v9, 4, v8")
        a(f"v_add_u32 v15, 8192, v15")
        a(f"s_lshl_b32 {sT[3]}, {sB}, 1")
        a(f"s_add_u32 {sT[3]}, {sT[3]}, {sHG}")
        a(f"s_lshl_b32 {sT[3]}, {sT[3]}, 14")
        a(f"s_lshl_b32 {sT[0]}, {sW}, 8")
        a(f"s_add_u32 {sT[3]}, {sT[3]}, {sT[0]}")
        a(f"s_add_u32 {sT[3]}, {sT[3]}, {H2}")
        a(f"s_lshl_b32 {sT[4]}, {sW}, 12")
        a(f"s_add_u32 {sT[4]}, {sT[4]}, {QS}")

    def h2_issue(self):
        a = self.a
        for nn in range(4):
            a(f"s_add_u32 {sT[0]}, {sT[4]}, {nn*1024}")
            a(f"s_mov_b32 m0, {sT[0]}")
            a(f"s_add_u32 {sT[1]}, {sT[3]}, {(nn>>1)*128}")
            a(f"buffer_load_dwordx4 v{14+(nn&1)}, {sWS}, {sT[1]} offen sc1 lds")

    def finish(self):
        a = self.a
        a("FIN:")
        if self.stamps:
            lab = a.label("NOST")
            a(f"s_and_b32 {sT[0]}, {sW}, 3")
            a(f"s_cmp_lg_u32 {sT[0]}, 0")
            a(f"s_cbranch_scc1 {lab}")
            a(f"s_lshl_b32 {sT[0]}, s2, 1")
            a(f"s_lshr_b32 {sT[1]}, {sW}, 2")
            a(f"s_add_u32 {sT[0]}, {sT[0]}, {sT[1]}")
            a(f"s_lshl_b32 {sT[0]}, {sT[0]}, 7")
            a(f"s_add_u32 {sT[0]}, {sT[0]}, {DBGT}")
            a("s_memrealtime s[100:101]")
            a("s_waitcnt lgkmcnt(0)")
            a("v_mov_b32 v8, 0")
            for i in range(11):
                a(f"v_mov_b32 v10, s{80+2*i}")
                a(f"v_mov_b32 v11, s{81+2*i}")
                a(f"buffer_store_dwordx2 v[10:11], v8, {sWS}, {sT[0]} offen offset:{i*8}")
                a("s_nop 1")
            a("s_waitcnt vmcnt(0)")
            a(f"{lab}:")
        a("END:")
        a("s_endpgm")
        a("FAIL:")
        a("s_load_dwordx2 s[64:65], s[0:1], 88")
        a("s_waitcnt lgkmcnt(0)")
        a("s_mov_b32 s66, 256")
        a("s_mov_b32 s67, 0x20000")
        a("v_mov_b32 v8, 0")
        a("v_mov_b32 v9, 0xdead")
        a("buffer_store_dword v9, v8, s[64:67], 0 offen")
        a("s_waitcnt vmcnt(0)")
        a("s_endpgm")

    def build(self):
        self.prologue()
        self.phaseA_entry()
        return self.wrap()

    def phaseA_entry(self):
        a = self.a
        self.phaseA()
        if self.stop <= 2:
            a("s_waitcnt vmcnt(0)")
            a("s_barrier")
            a("s_branch FIN")
            self.loader()
            self.finish()
            return
        from gen_rest import rest
        rest(self)

    def wrap(self):
        body = self.a.finish()
        hdr = open('cdna_kernels/%s.s.ref' % KNAME[:-7]).read().split('\n')
        com = [l for l in hdr if l.startswith(';') and '@launch' not in l and not l.startswith('; Override') and not l.startswith('; grid=')]
        com = com[:15]
        head = '\n'.join(com) + f"\n; @launch grid=(256,1,1) block=(512,1,1) lds={LDS_BYTES}\n"
        head += f""".amdgcn_target "amdgcn-amd-amdhsa--gfx950"
.text
.globl {KNAME}
.p2align 8
.type {KNAME},@function
{KNAME}:
"""
        tail = f"""
.section .rodata,"a"
.p2align 6
.amdhsa_kernel {KNAME}
  .amdhsa_next_free_vgpr 256
  .amdhsa_next_free_sgpr 102
  .amdhsa_accum_offset 128
  .amdhsa_group_segment_fixed_size 0
  .amdhsa_kernarg_size 104
  .amdhsa_user_sgpr_count 2
  .amdhsa_user_sgpr_kernarg_segment_ptr 1
  .amdhsa_system_sgpr_workgroup_id_x 1
.end_amdhsa_kernel
"""
        return head + body + tail

if __name__ == "__main__":
    import argparse
    p = argparse.ArgumentParser()
    p.add_argument("--stop", type=int, default=99)
    p.add_argument("--stamps", default="")
    p.add_argument("--no-nt", action="store_true")
    p.add_argument("--TH", type=int, default=8)
    p.add_argument("--N1", type=int, default=8)
    p.add_argument("--perturb", type=float, default=0)
    p.add_argument("-o", default="k.s")
    args = p.parse_args()
    g = Gen(stop=args.stop, stamps=(["start"] + args.stamps.split(",") if args.stamps else None), nt=not args.no_nt, TH=args.TH, N1=args.N1)
    g.perturb = args.perturb
    s = g.build()
    open(args.o, "w").write(s)
    print("wrote", args.o, len(s), "bytes; nops inserted:", g.a.nops)
```

```python
from gen import *

vK, vVlo, vVhi, vQ0, vQ1, vCK0, vCK1 = "v96", "v97", "v98", "v99", "v100", "v101", "v102"
vMXw, vMXr, vPBw, vPBr, vVDw, vVDr, vOA, vOB, vST = "v103", "v104", "v105", "v106", "v107", "v108", "v109", "v110", "v111"
vWUV, vWO = "v112", "v113"
sO, sST = "s76", "s77"
sUVo, sUVm, sWOo, sWOm = sT[5], sT[6], sT[7], sT[8]

def b_addr(g):
    a = g.a; t0, t1 = sT[0], sT[1]
    a(f"s_lshl_b32 {t0}, {sW}, 4")
    a(f"v_add_u32 v8, {t0}, {vJ}")
    a(f"v_mul_u32_u24 v8, {KVP}, v8")
    a(f"v_lshl_add_u32 {vK}, {vG}, 4, v8")
    a(f"v_lshrrev_b32 v8, 2, {vJ}")
    a(f"v_lshl_add_u32 v8, {vG}, 2, v8")
    a(f"v_mul_u32_u24 v8, {KVP}, v8")
    a(f"v_and_b32 v9, 3, {vL}")
    a(f"v_lshl_add_u32 v8, v9, 3, v8")
    a(f"s_lshl_b32 {t0}, {sW}, 7")
    a(f"v_add_u32 {vVlo}, {t0}, v8")
    a(f"v_add_u32 {vVhi}, {64*KVP}, {vVlo}")
    a(f"v_lshrrev_b32 v8, 1, {vJ}")
    a(f"v_xor_b32 v8, v8, {vG}")
    a(f"v_lshlrev_b32 v9, 7, {vJ}")
    a(f"v_add_u32 v9, {QS}, v9")
    a(f"v_lshl_add_u32 {vQ0}, v8, 4, v9")
    a(f"v_xor_b32 v8, 4, v8")
    a(f"v_lshl_add_u32 {vQ1}, v8, 4, v9")
    a(f"s_lshl_b32 {t0}, {sW}, 12")
    a(f"s_add_u32 {t0}, {t0}, {QS}")
    a(f"v_lshlrev_b32 v9, 4, {vL}")
    a(f"v_add_u32 {vCK0}, {t0}, v9")
    a(f"v_lshlrev_b32 v8, 5, {vJ}")
    a(f"v_add_u32 {vMXr}, {MX}, v8")
    a(f"s_lshl_b32 {t0}, {sW}, 2")
    a(f"v_add_u32 {vMXw}, {t0}, {vMXr}")
    a(f"v_lshlrev_b32 v8, 4, {vL}")
    a(f"v_add_u32 {vPBr}, {PB}, v8")
    a(f"s_lshr_b32 {t1}, {sW}, 1")
    a(f"s_lshl_b32 {t1}, {t1}, 10")
    a(f"s_and_b32 {t0}, {sW}, 1")
    a(f"s_lshl_b32 {t0}, {t0}, 3")
    a(f"s_add_u32 {t1}, {t1}, {t0}")
    a(f"v_add_u32 {vPBw}, {t1}, {vPBr}")
    a(f"v_and_b32 v8, 7, {vJ}")
    a(f"v_lshlrev_b32 v8, 17, v8")
    a(f"v_lshrrev_b32 v9, 3, {vJ}")
    a(f"v_lshl_add_u32 v8, v9, 6, v8")
    a(f"v_lshl_add_u32 {vOA}, {vG}, 4, v8")
    a(f"v_xor_b32 {vOB}, 64, {vOA}")
    a(f"v_add_u32 {vOB}, 0x100000, {vOB}")
    a(f"s_lshl_b32 {sO}, {sHG}, 21")
    a(f"s_lshl_b32 {t0}, {sW}, 14")
    a(f"s_add_u32 {sO}, {sO}, {t0}")
    a(f"s_lshl_b32 {t0}, {sB}, 12")
    a(f"s_add_u32 {sO}, {sO}, {t0}")
    a(f"s_lshl_b32 {t0}, {sKC}, 7")
    a(f"s_add_u32 {sO}, {sO}, {t0}")
    a(f"s_add_u32 {sO}, {sO}, {H3}")
    a(f"v_lshlrev_b32 {vST}, 11, {vJ}")
    a(f"s_lshl_b32 {sST}, {sHG}, 15")
    a(f"s_lshl_b32 {t0}, {sB}, 9")
    a(f"s_add_u32 {sST}, {sST}, {t0}")
    a(f"s_lshl_b32 {t0}, {sKC}, 4")
    a(f"s_add_u32 {sST}, {sST}, {t0}")
    a(f"s_add_u32 {sST}, {sST}, {STATS}")

def tail_dma_addr(g):
    a = g.a; t0, t1 = sT[0], sT[1]
    a(f"s_and_b32 {t0}, {sW}, 1")
    a(f"s_lshl_b32 {t0}, {t0}, 2")
    a(f"v_add_u32 v8, {t0}, {vG}")
    a(f"v_lshrrev_b32 v9, 1, {vJ}")
    a(f"v_xor_b32 v8, v8, v9")
    a(f"v_lshlrev_b32 v8, 5, v8")
    a(f"v_lshl_add_u32 v8, {vG}, 13, v8")
    a(f"v_and_b32 v9, 1, {vL}")
    a(f"v_lshl_add_u32 {vWUV}, v9, 4, v8")
    a(f"s_sub_u32 {t1}, {sW}, 4")
    a(f"s_lshl_b32 {sUVo}, {sI}, 6")
    a(f"s_lshl_b32 {t0}, {t1}, 4")
    a(f"s_add_u32 {sUVo}, {sUVo}, {t0}")
    a(f"s_lshl_b32 {sUVo}, {sUVo}, 13")
    a(f"s_lshl_b32 {t0}, {sH}, 8")
    a(f"s_add_u32 {sUVo}, {sUVo}, {t0}")
    a(f"s_lshl_b32 {sUVm}, {t1}, 12")
    a(f"s_add_u32 {sUVm}, {sUVm}, {WUV}")
    a(f"v_lshrrev_b32 v8, 1, {vL}")
    a(f"v_lshlrev_b32 v8, 10, v8")
    a(f"v_lshl_add_u32 {vWO}, v9, 4, v8")
    a(f"s_lshl_b32 {sWOo}, {sHQ}, 9")
    a(f"s_lshl_b32 {t0}, {t1}, 7")
    a(f"s_add_u32 {sWOo}, {sWOo}, {t0}")
    a(f"s_lshl_b32 {sWOo}, {sWOo}, 10")
    a(f"s_lshl_b32 {t0}, {sMS}, 5")
    a(f"s_add_u32 {sWOo}, {sWOo}, {t0}")
    a(f"s_lshl_b32 {sWOm}, {t1}, 12")
    a(f"s_add_u32 {sWOm}, {sWOm}, {WO}")

def tail_dma(g, n):
    a = g.a
    if n < 4:
        a(f"s_mov_b32 m0, {sUVm}")
        a(f"s_add_u32 {sUVm}, {sUVm}, 1024")
        a(f"buffer_load_dwordx4 {vWUV}, {sWUV}, {sUVo} offen{g.nt} lds")
        a(f"s_add_u32 {sUVo}, {sUVo}, 32768")
    else:
        a(f"s_mov_b32 m0, {sWOm}")
        a(f"s_add_u32 {sWOm}, {sWOm}, 1024")
        a(f"buffer_load_dwordx4 {vWO}, {sWO}, {sWOo} offen{g.nt} lds")
        a(f"s_add_u32 {sWOo}, {sWOo}, 32768")

def qk(g, with_dma):
    a = g.a
    def rd(s):
        a(f"ds_read_b128 {vr(64+4*(s%8),4)}, {vQ0 if s%2==0 else vQ1} offset:{(s>>1)*2048}")
    for s in range(8): rd(s)
    for s in range(16):
        a(f"s_waitcnt lgkmcnt({min(7,15-s)})")
        c = "0" if s == 0 else "v[16:19]"
        a(f"v_mfma_f32_16x16x32_bf16 v[16:19], {ar(4*s,4)}, {vr(64+4*(s%8),4)}, {c}")
        if s + 8 < 16: rd(s + 8)
        if with_dma and 8 <= s < 12:
            tail_dma(g, s - 8)

def phaseB(g):
    a = g.a
    t0, t1 = sT[0], sT[1]
    a("s_barrier")
    g.stamp("x1")
    for s in range(16):
        a(f"ds_read_b128 {ar(4*s,4)}, {vK} offset:{s*64}")
        if s == 9: a("s_waitcnt lgkmcnt(4)")
        if s == 15: a("s_waitcnt lgkmcnt(6)")
    g.stamp("kx")
    n = 0
    for u in range(4):
        for t in range(4):
            for half in range(2):
                base = vVlo if u < 2 else vVhi
                off = (u & 1) * 32 * KVP + half * 16 * KVP + t * 32
                a(f"ds_read_b64_tr_b16 {ar(64+(t*4+u)*4+2*half,2)}, {base} offset:{off}")
                n += 1
                if n % 8 == 0: a("s_waitcnt lgkmcnt(6)")
    g.stamp("vx")
    a(f"s_cmp_ge_u32 {sW}, 4")
    a("s_cbranch_scc1 Q_OK")
    a("Q_CHECK:")
    a("s_waitcnt vmcnt(0)")
    g.stamp("qw")
    for nn in range(4):
        a(f"ds_read_b128 {vr(64+4*nn,4)}, {vCK0} offset:{nn*1024}")
    a("v_mov_b32 v20, 0")
    for nn in range(4):
        a(f"s_waitcnt lgkmcnt({3-nn})")
        for q in range(4):
            a(f"v_bitop3_b32 v20, v20, v{64+4*nn+q}, {sM[q]} bitop3:0xf6")
    g.tagcheck_end("v20", "Q_RETRY")
    a("Q_OK:")
    a("s_waitcnt lgkmcnt(0)")
    a("s_barrier")
    g.stamp("x2")
    a(f"s_cmp_ge_u32 {sW}, 4")
    a("s_cbranch_scc1 QK_DMA")
    a("QK_PLAIN:")
    qk(g, False)
    a("s_branch QK_DONE")
    a("QK_DMA:")
    qk(g, True)
    a("QK_DONE:")
    g.stamp("qk")
    a("v_max3_f32 v21, v16, v17, v18")
    a("v_max_f32 v21, v21, v19")
    g.cross_rows(["v21"], ["v22"], "v_max_f32")
    a(f"ds_write_b32 {vMXw}, v21")
    a("s_waitcnt lgkmcnt(0)")
    a("s_barrier")
    a(f"ds_read_b128 v[24:27], {vMXr}")
    a(f"ds_read_b128 v[28:31], {vMXr} offset:16")
    a("s_waitcnt lgkmcnt(0)")
    a("v_max3_f32 v21, v24, v25, v26")
    a("v_max3_f32 v22, v27, v28, v29")
    a("v_max3_f32 v21, v21, v30, v31")
    a("v_max_f32 v21, v21, v22")
    for r in range(4):
        a(f"v_sub_f32 v{16+r}, v{16+r}, v21")
    for r in range(4):
        a(f"v_exp_f32 v{16+r}, v{16+r}")
    g.stamp("mx")
    a("v_add_f32 v22, v16, v17")
    a("v_add_f32 v23, v18, v19")
    a("v_cvt_pk_bf16_f32 v24, v16, v17")
    a("v_cvt_pk_bf16_f32 v25, v18, v19")
    a("v_add_f32 v22, v22, v23")
    a(f"ds_write_b64 {vPBw}, v[24:25]")
    g.cross_rows(["v22"], ["v23"], "v_add_f32")
    a(f"ds_write_b32 {vMXw}, v22 offset:512")
    a("s_waitcnt lgkmcnt(0)")
    a("s_barrier")
    g.stamp("pb")
    for u in range(4):
        a(f"ds_read_b128 {vr(64+4*u,4)}, {vPBr} offset:{u*1024}")
    lab = a.label("NOSTAT")
    a(f"s_cmp_lg_u32 {sW}, 3")
    a(f"s_cbranch_scc1 {lab}")
    a(f"ds_read_b128 v[24:27], {vMXr} offset:512")
    a(f"ds_read_b128 v[28:31], {vMXr} offset:528")
    a("s_waitcnt lgkmcnt(0)")
    a("v_add_f32 v24, v24, v25"); a("v_add_f32 v26, v26, v27"); a("v_add_f32 v28, v28, v29"); a("v_add_f32 v30, v30, v31")
    a("v_add_f32 v24, v24, v26"); a("v_add_f32 v28, v28, v30")
    a("v_add_f32 v25, v24, v28")
    a("v_mov_b32 v24, v21")
    a(f"v_mov_b32 v26, {sT32}")
    a(f"v_mov_b32 v27, {sT32}")
    a("s_mov_b64 exec, 0xffff")
    a(f"buffer_store_dwordx4 v[24:27], {vST}, {sWS}, {sST} offen sc1")
    a("s_mov_b64 exec, -1")
    a(f"{lab}:")
    for u in range(4):
        a(f"s_waitcnt lgkmcnt({3-u})")
        for t in range(4):
            c = "0" if u == 0 else vr(32+4*t, 4)
            a(f"v_mfma_f32_16x16x32_bf16 {vr(32+4*t,4)}, {ar(64+(t*4+u)*4,4)}, {vr(64+4*u,4)}, {c}")
    a("s_mov_b32 vcc_lo, 0x00ff00ff")
    a("s_mov_b32 vcc_hi, 0x00ff00ff")
    for t in range(4):
        a(f"v_cvt_pk_bf16_f32 v{48+2*t}, v{32+4*t}, v{33+4*t}")
        a(f"v_cvt_pk_bf16_f32 v{49+2*t}, v{34+4*t}, v{35+4*t}")
    for q in range(8):
        a(f"v_bfi_b32 v{48+q}, {vC1}, {sM[q%4]}, v{48+q}")
    for q in range(4):
        a(f"v_cndmask_b32_dpp v{56+q}, v{52+q}, v{48+q}, vcc row_ror:8 row_mask:0xf bank_mask:0xf")
    a("s_not_b64 vcc, vcc")
    a(f"buffer_store_dwordx4 v[56:59], {vOA}, {sWS}, {sO} offen sc1")
    for q in range(4):
        a(f"v_cndmask_b32_dpp v{60+q}, v{52+q}, v{48+q}, vcc row_ror:8 row_mask:0xf bank_mask:0xf")
    a(f"buffer_store_dwordx4 v[60:63], {vOB}, {sWS}, {sO} offen sc1")
    g.stamp("opub")

def q_retry(g):
    a = g.a
    a("Q_RETRY:")
    g.spin_check()
    g.h2_issue()
    a("s_branch Q_CHECK")

def final_reduce(g, acc):
    a = g.a
    a(f"v_lshrrev_b32 v8, 2, {vJ}")
    a(f"v_lshlrev_b32 v8, 8, v8")
    a(f"v_and_b32 v9, 3, {vJ}")
    a(f"v_lshl_add_u32 v8, v9, 6, v8")
    a(f"v_lshl_add_u32 v8, {vG}, 4, v8")
    a(f"v_add_u32 v8, {RED}, v8")

def red_write_addr(g, dst):
    a = g.a
    a(f"v_and_b32 v8, 3, {vJ}")
    a(f"v_lshlrev_b32 v8, 6, v8")
    a(f"v_lshl_add_u32 v8, {vG}, 4, v8")
    a(f"s_lshl_b32 {sT[0]}, {sW}, 8")
    a(f"s_add_u32 {sT[0]}, {sT[0]}, {RED}")
    a(f"v_add_u32 {dst}, {sT[0]}, v8")

def red_read_addr(g, dst):
    a = g.a
    a(f"v_lshrrev_b32 v8, 2, {vJ}")
    a(f"v_lshlrev_b32 v8, 8, v8")
    a(f"v_and_b32 v9, 3, {vJ}")
    a(f"v_lshl_add_u32 v8, v9, 6, v8")
    a(f"v_lshl_add_u32 v8, {vG}, 4, v8")
    a(f"v_add_u32 {dst}, {RED}, v8")

def red_final(g, addr, r0):
    a = g.a
    a(f"ds_read_b128 {vr(r0,4)}, {addr}")
    a(f"ds_read_b128 {vr(r0+4,4)}, {addr} offset:1024")
    a("s_waitcnt lgkmcnt(0)")
    for r in range(4): a(f"v_add_f32 v{r0+r}, v{r0+r}, v{r0+4+r}")
    for sh in (8, 4):
        for r in range(4):
            a(f"v_add_f32_dpp v{r0+r}, v{r0+r}, v{r0+r} row_ror:{sh} row_mask:0xf bank_mask:0xf")

vRW, vRR = "v114", "v115"
vLIN8 = "v116"

def phaseC(g):
    a = g.a
    t0, t1, t2 = sT[0], sT[1], sT[2]
    a(f"v_lshlrev_b32 {vLIN8}, 3, {vL}")
    red_write_addr(g, vRW)
    red_read_addr(g, vRR)
    a(f"s_cmp_ge_u32 {sW}, 4")
    a("s_cbranch_scc1 C_HI")
    a(f"v_and_b32 v8, 31, {vL}")
    a(f"v_lshlrev_b32 v100, 4, v8")
    a(f"s_lshl_b32 {sT[9]}, {sH}, 2")
    a(f"s_add_u32 {sT[9]}, {sT[9]}, {sW}")
    a(f"s_lshl_b32 {sT[9]}, {sT[9]}, 9")
    a(f"s_add_u32 {sT[9]}, {sT[9]}, {STATS}")
    a(f"buffer_load_dwordx4 v[16:19], v100, {sWS}, {sT[9]} offen sc1")
    a(f"v_lshrrev_b32 v8, 3, {vL}")
    a(f"v_lshlrev_b32 v8, 7, v8")
    a(f"v_bfe_u32 v9, {vL}, 1, 2")
    a(f"v_xor_b32 v9, v9, {vG}")
    a(f"v_lshl_add_u32 v8, v9, 5, v8")
    a(f"v_and_b32 v9, 1, {vL}")
    a(f"v_lshl_add_u32 v101, v9, 4, v8")
    a(f"s_lshl_b32 {sT[10]}, {sH}, 3")
    a(f"s_add_u32 {sT[10]}, {sT[10]}, {sI}")
    a(f"s_lshl_b32 {sT[10]}, {sT[10]}, 14")
    a(f"s_lshl_b32 {t0}, {sW}, 12")
    a(f"s_add_u32 {sT[10]}, {sT[10]}, {t0}")
    a(f"s_add_u32 {sT[10]}, {sT[10]}, {H3}")
    a(f"s_add_u32 {sT[11]}, {t0}, {ST3}")
    a(f"v_lshrrev_b32 v8, 2, {vJ}")
    a(f"v_lshl_add_u32 v8, {vG}, 2, v8")
    a(f"v_bfe_u32 v9, v8, 1, 2")
    a(f"v_lshlrev_b32 v9, 5, v9")
    a(f"v_lshl_add_u32 v9, v8, 7, v9")
    a(f"v_and_b32 v8, 3, {vL}")
    a(f"v_lshl_add_u32 v9, v8, 3, v9")
    a(f"v_add_u32 v102, {sT[11]}, v9")
    assert ST3 % 128 == 0
    for tau in range(1, 4):
        a(f"v_xor_b32 v{102+tau}, {tau*32}, v102")
    a(f"s_lshl_b32 {t1}, {sW}, 6")
    a(f"s_add_u32 {t1}, {t1}, {AL}")
    a(f"v_and_b32 v8, 31, {vL}")
    a(f"v_lshl_add_u32 v106, v8, 1, {t1}")
    a(f"v_lshl_add_u32 v107, {vG}, 3, {t1}")
    a(f"v_and_b32 v8, 1, {vG}")
    a(f"v_lshrrev_b32 v9, 2, {vJ}")
    a(f"v_lshl_add_u32 v10, v8, 2, v9")
    a(f"v_lshlrev_b32 v10, 5, v10")
    a(f"v_lshl_add_u32 v9, v8, 4, v9")
    a(f"v_lshrrev_b32 v8, 1, {vG}")
    a(f"v_lshl_add_u32 v9, v8, 2, v9")
    a(f"v_lshl_add_u32 v10, v9, 8, v10")
    a(f"v_and_b32 v8, 3, {vL}")
    a(f"v_lshl_add_u32 v108, v8, 3, v10")
    assert WUV == 0
    a(f"v_lshrrev_b32 v8, 2, {vJ}")
    a(f"v_lshlrev_b32 v8, 6, v8")
    a(f"v_lshl_add_u32 v109, {vG}, 4, v8")
    a(f"s_lshl_b32 {sT[12]}, {sH}, 3")
    a(f"s_add_u32 {sT[12]}, {sT[12]}, {sI}")
    a(f"s_lshl_b32 {sT[12]}, {sT[12]}, 10")
    a(f"s_lshl_b32 {t0}, {sW}, 8")
    a(f"s_add_u32 {sT[12]}, {sT[12]}, {t0}")
    a(f"s_add_u32 {sT[12]}, {sT[12]}, {H4}")
    a("s_waitcnt vmcnt(0)")
    g.stamp("ack3")
    def dma3():
        a(f"s_mov_b32 m0, {sT[11]}")
        a("s_nop 0")
        for i in range(4):
            a(f"buffer_load_dwordx4 v101, {sWS}, {sT[10]} offen offset:{i*1024} sc1 lds")
    dma3()
    a("s_barrier")
    n = 0
    for tp in range(8):
        a(f"v_xor_b32 v8, {tp*32}, v108")
        for u in range(2):
            for half in range(2):
                a(f"ds_read_b64_tr_b16 {ar((tp*2+u)*4+2*half,2)}, v8 offset:{u*8192+half*2048}")
                n += 1
        if tp % 2 == 1: a("s_waitcnt lgkmcnt(6)")
    a("C_LOOP:")
    a(f"v_cmp_ne_u32 vcc, {sT32}, v18")
    a("s_cbranch_vccnz C_STATS_BAD")
    a("v_mov_b32 v20, v16")
    g.wave_allreduce(["v20"], ["v21"], "v_max_f32", skip32=True)
    a("v_sub_f32 v16, v16, v20")
    a("v_exp_f32 v16, v16")
    a("v_mul_f32 v20, v16, v17")
    g.wave_allreduce(["v20"], ["v21"], "v_add_f32", skip32=True)
    a("v_rcp_f32 v20, v20")
    a("v_mul_f32 v16, v16, v20")
    a("v_cvt_pk_bf16_f32 v16, v16, v16")
    a("ds_write_b16 v106, v16")
    a("s_waitcnt lgkmcnt(0)")
    a("ds_read_b64 v[24:25], v107")
    a("ds_read_b64 v[26:27], v107 offset:32")
    a("C_HAVE:")
    a("s_waitcnt vmcnt(0)")
    for tau in range(4):
        a(f"ds_read_b64_tr_b16 {vr(32+4*tau,2)}, v{102+tau}")
        a(f"ds_read_b64_tr_b16 {vr(32+4*tau+2,2)}, v{102+tau} offset:2048")
    a("v_mov_b32 v20, 0")
    for tau in range(4):
        a(f"s_waitcnt lgkmcnt({2*(3-tau)})")
        a(f"v_mfma_f32_16x16x32_bf16 {vr(48+4*tau,4)}, {vr(32+4*tau,4)}, v[24:27], 0")
        for q in range(4):
            a(f"v_bitop3_b32 v20, v20, v{32+4*tau+q}, {vVM} bitop3:0xf6")
    g.tagcheck_end("v20", "C_PAY_BAD")
    g.stamp("h3")
    for tau in range(4):
        a(f"v_cvt_pk_bf16_f32 v{16+2*tau}, v{48+4*tau}, v{49+4*tau}")
        a(f"v_cvt_pk_bf16_f32 v{17+2*tau}, v{50+4*tau}, v{51+4*tau}")
    for u in range(2):
        for tp in range(8):
            c = "0" if u == 0 else vr(64+4*tp, 4)
            a(f"v_mfma_f32_16x16x32_bf16 {vr(64+4*tp,4)}, {ar((tp*2+u)*4,4)}, {vr(16+4*u,4)}, {c}")
    for tp in range(8):
        a(f"v_cvt_pk_bf16_f32 v{32+2*tp}, v{64+4*tp}, v{65+4*tp}")
        a(f"v_cvt_pk_bf16_f32 v{33+2*tp}, v{66+4*tp}, v{67+4*tp}")
    for kap in range(1, 4):
        for q in range(4):
            a(f"v_mov_b32_dpp v{32+q}, v{32+4*kap+q} quad_perm:[0,1,2,3] row_mask:0xf bank_mask:{hex(1<<kap)}")
    for q in range(4):
        a(f"v_bfi_b32 v{32+q}, {vC1}, {sM[q]}, v{32+q}")
    a("s_mov_b32 exec_lo, 0x11111111")
    a("s_mov_b32 exec_hi, 0x11111111")
    a(f"buffer_store_dwordx4 v[32:35], v109, {sWS}, {sT[12]} offen sc1")
    a("s_mov_b64 exec, -1")
    a("s_branch C_END")
    a("C_STATS_BAD:")
    g.spin_check()
    a(f"buffer_load_dwordx4 v[16:19], v100, {sWS}, {sT[9]} offen sc1")
    a("s_waitcnt vmcnt(0)")
    a("s_branch C_LOOP")
    a("C_PAY_BAD:")
    g.spin_check()
    dma3()
    a("s_branch C_HAVE")
    a("C_HI:")
    a("s_waitcnt vmcnt(2)")
    a("s_barrier")
    for n in range(4, 8): tail_dma(g, n)
    ffn_addr(g)
    ffn_dma(g)
    lab = a.label("CH")
    a(f"s_cmp_ge_u32 {sFS}, 86")
    a(f"s_cbranch_scc1 {lab}")
    a("s_waitcnt vmcnt(12)")
    a("s_barrier")
    a("s_branch D_HI")
    a(f"{lab}:")
    a("s_waitcnt vmcnt(0)")
    a("s_barrier")
    a("s_branch D_HI")
    a("C_END:")

def wo_frags(g):
    a = g.a
    a(f"s_lshl_b32 {sT[0]}, {sW}, 12")
    a(f"s_add_u32 {sT[0]}, {sT[0]}, {WO}")
    a(f"v_add_u32 v8, {sT[0]}, {vLIN8}")
    for k in range(4):
        a(f"ds_read_b64_tr_b16 {ar(64+4*k,2)}, v8 offset:{k*1024}")
        a(f"ds_read_b64_tr_b16 {ar(64+4*k+2,2)}, v8 offset:{k*1024+512}")

def ffn_addr(g):
    a = g.a
    a(f"v_lshrrev_b32 v8, 1, {vL}")
    a(f"v_mul_u32_u24 v8, 2752, v8")
    a(f"v_and_b32 v9, 1, {vL}")
    a(f"v_lshl_add_u32 v112, v9, 4, v8")
    a(f"v_lshlrev_b32 v113, 4, {vL}")

def ffn_dma(g):
    a = g.a
    t0, t1, t2 = sT[0], sT[1], sT[2]
    lab = a.label("NOFFN")
    a(f"s_cmp_ge_u32 {sFS}, 86")
    a(f"s_cbranch_scc1 {lab}")
    a(f"s_sub_u32 {t2}, {sW}, 4")
    a(f"s_mul_i32 {t0}, {t2}, {128*2752}")
    a(f"s_lshl_b32 {t1}, {sFS}, 5")
    a(f"s_add_u32 {t0}, {t0}, {t1}")
    a(f"s_lshl_b32 {t1}, {t2}, 12")
    a(f"s_add_u32 {t1}, {t1}, {WGI}")
    for nn in range(4):
        a(f"s_mov_b32 m0, {t1}")
        a("s_nop 0")
        a(f"buffer_load_dwordx4 v112, {sWG}, {t0} offen{g.nt} lds")
        a(f"s_add_u32 {sT[3]}, {t1}, {WUI-WGI}")
        a(f"s_mov_b32 m0, {sT[3]}")
        a(f"s_add_u32 {t1}, {t1}, 1024")
        a(f"buffer_load_dwordx4 v112, {sWU}, {t0} offen{g.nt} lds")
        a(f"s_add_u32 {t0}, {t0}, {32*2752}")
    a(f"s_lshl_b32 {t0}, {sFS}, 4")
    a(f"s_lshl_b32 {t1}, {t2}, 2")
    a(f"s_add_u32 {t0}, {t0}, {t1}")
    a(f"s_lshl_b32 {t0}, {t0}, 10")
    a(f"s_mul_i32 {t1}, {t1}, {KVP}")
    a(f"s_add_u32 {t1}, {t1}, {WDI}")
    for nn in range(4):
        a(f"s_mov_b32 m0, {t1}")
        a(f"s_add_u32 {t1}, {t1}, {KVP}")
        a(f"buffer_load_dwordx4 v113, {sWD}, {t0} offen{g.nt} lds")
        a(f"s_add_u32 {t0}, {t0}, 1024")
    a(f"{lab}:")

def phaseD(g):
    a = g.a
    t0, t1, t2 = sT[0], sT[1], sT[2]
    a(f"v_lshrrev_b32 v8, 2, {vJ}")
    a(f"v_lshlrev_b32 v8, 10, v8")
    a(f"v_and_b32 v9, 3, {vJ}")
    a(f"v_lshl_add_u32 v8, v9, 8, v8")
    a(f"v_lshl_add_u32 v100, {vG}, 4, v8")
    a(f"s_lshl_b32 {sT[9]}, {sHQ}, 2")
    a(f"s_add_u32 {sT[9]}, {sT[9]}, {sW}")
    a(f"s_lshl_b32 {sT[9]}, {sT[9]}, 13")
    a(f"s_add_u32 {sT[9]}, {sT[9]}, {H4}")
    a(f"s_add_u32 {sT[10]}, {sT[9]}, 4096")
    a(f"v_lshlrev_b32 v101, 5, {vJ}")
    a(f"v_lshl_add_u32 v101, {vG}, 3, v101")
    a(f"s_lshl_b32 {sT[11]}, {sMS}, 3")
    a(f"s_add_u32 {sT[11]}, {sT[11]}, {sHQ}")
    a(f"s_lshl_b32 {sT[11]}, {sT[11]}, 7")
    a(f"s_add_u32 {sT[11]}, {sT[11]}, {H56}")
    a("s_waitcnt vmcnt(0) lgkmcnt(0)")
    a("s_barrier")
    g.stamp("cd")
    def loads():
        for k in range(4):
            for ps in range(2):
                a(f"buffer_load_dwordx4 {vr(64+8*k+4*ps,4)}, v100, {sWS}, {sT[9+ps]} offen offset:{k*64} sc1")
    loads()
    wo_frags(g)
    a("D_WAIT:")
    a("v_mov_b32 v20, 0")
    a("s_waitcnt vmcnt(0) lgkmcnt(0)")
    for n in range(8):
        c = "0" if n == 0 else "v[16:19]"
        a(f"v_mfma_f32_16x16x32_bf16 v[16:19], {ar(64+4*(n>>1),4)}, {vr(64+4*n,4)}, {c}")
        for q in range(4):
            a(f"v_bitop3_b32 v20, v20, v{64+4*n+q}, {sM[q]} bitop3:0xf6")
    g.tagcheck_end("v20", "D_BAD")
    g.stamp("h4")
    for sh in (8, 4):
        for r in range(4):
            a(f"v_add_f32_dpp v{16+r}, v{16+r}, v{16+r} row_ror:{sh} row_mask:0xf bank_mask:0xf")
    a(f"ds_write_b128 {vRW}, v[16:19]")
    a("s_waitcnt lgkmcnt(0)")
    a("s_barrier")
    a(f"s_cmp_lg_u32 {sW}, 0")
    a("s_cbranch_scc1 D_END")
    a(f"ds_read_b128 v[16:19], {vRR}")
    a("s_waitcnt lgkmcnt(0)")
    for sh in (8, 4):
        for r in range(4):
            a(f"v_add_f32_dpp v{16+r}, v{16+r}, v{16+r} row_ror:{sh} row_mask:0xf bank_mask:0xf")
    a("s_mov_b32 exec_lo, 0x000f000f")
    a("s_mov_b32 exec_hi, 0x000f000f")
    a("v_cvt_pk_bf16_f32 v24, v16, v17")
    a("v_cvt_pk_bf16_f32 v25, v18, v19")
    a(f"v_bfi_b32 v24, {vC1}, {vMa}, v24")
    a(f"v_bfi_b32 v25, {vC1}, {vMb}, v25")
    a(f"buffer_store_dwordx2 v[24:25], v101, {sWS}, {sT[11]} offen sc1")
    a("s_mov_b64 exec, -1")
    a("s_branch D_END")
    a("D_BAD:")
    g.spin_check()
    loads()
    a("s_branch D_WAIT")
    a("D_HI:")
    a("s_barrier")
    a("D_END:")

def phaseE(g):
    a = g.a
    t0, t1, t2 = sT[0], sT[1], sT[2]
    a(f"s_cmp_ge_u32 {sFS}, 86")
    a("s_cbranch_scc1 FIN")
    a(f"v_and_b32 v8, 3, {vJ}")
    a(f"v_lshlrev_b32 v8, 10, v8")
    a(f"v_lshl_add_u32 v8, {vG}, 3, v8")
    a(f"s_lshl_b32 {t0}, {sW}, 7")
    a(f"v_add_u32 v8, {t0}, v8")
    for t in range(4):
        a(f"buffer_load_dwordx2 {vr(96+2*t,2)}, v8, {sX}, 0 offen offset:{t*32}")
    a(f"s_lshl_b32 {t0}, {sW}, 11")
    a(f"s_add_u32 {t0}, {t0}, {WGI}")
    a(f"v_add_u32 v119, {t0}, {vLIN8}")
    a(f"v_lshrrev_b32 v9, 2, {vJ}")
    a(f"v_lshl_add_u32 v9, {vG}, 2, v9")
    a(f"v_mul_u32_u24 v9, {KVP}, v9")
    a(f"v_and_b32 v10, 3, {vL}")
    a(f"v_lshl_add_u32 v9, v10, 3, v9")
    a(f"s_lshl_b32 {t0}, {sW}, 7")
    a(f"s_add_u32 {t0}, {t0}, {WDI}")
    a(f"v_add_u32 v120, {t0}, v9")
    a(f"v_and_b32 v8, 3, {vJ}")
    a(f"v_and_b32 v9, 1, v8")
    a(f"v_lshlrev_b32 v9, 4, v9")
    a(f"v_mov_b32 v10, 0x3f80")
    a(f"v_lshlrev_b32 v10, v9, v10")
    a(f"v_cmp_gt_u32 vcc, 2, v8")
    a(f"v_cndmask_b32 v104, 0, v10, vcc")
    a(f"v_cndmask_b32 v105, v10, 0, vcc")
    a(f"v_mov_b32 v106, v104")
    a(f"v_mov_b32 v107, v105")
    a(f"s_lshl_b32 {sT[9]}, {sW}, 12")
    a(f"s_add_u32 {sT[10]}, {sT[9]}, {ST56}")
    a(f"s_add_u32 {sT[9]}, {sT[9]}, {H56}")
    a(f"v_lshlrev_b32 v108, 4, {vL}")
    a(f"v_add_u32 v109, {sT[10]}, {vLIN8}")
    a(f"v_and_b32 v8, 3, {vJ}")
    a(f"v_lshlrev_b32 v8, 6, v8")
    a(f"s_lshl_b32 {t0}, {sW}, 3")
    a(f"s_add_u32 {t0}, {t0}, {MX}")
    a(f"v_add_u32 v110, {t0}, v8")
    a(f"v_lshrrev_b32 v9, 2, {vJ}")
    a(f"v_lshl_add_u32 v8, v9, 4, v8")
    a(f"v_add_u32 v111, {MX}, v8")
    a(f"v_and_b32 v8, 3, {vJ}")
    a(f"v_lshlrev_b32 v8, 7, v8")
    a(f"v_lshl_add_u32 v8, {vG}, 5, v8")
    a(f"s_lshl_b32 {t0}, {sW}, 9")
    a(f"s_add_u32 {t0}, {t0}, {RED}")
    a(f"v_add_u32 v112, {t0}, v8")
    a(f"v_lshrrev_b32 v9, 2, {vJ}")
    a(f"v_lshl_add_u32 v8, v9, 9, v8")
    a(f"v_add_u32 v113, {RED}, v8")
    a(f"v_and_b32 v8, 3, {vJ}")
    a(f"v_lshlrev_b32 v8, 11, v8")
    a(f"v_lshl_add_u32 v8, {vG}, 4, v8")
    a(f"s_lshl_b32 {t0}, {sW}, 8")
    a(f"s_add_u32 {t0}, {t0}, {HB}")
    a(f"v_add_u32 v117, {t0}, v8")
    a(f"v_lshrrev_b32 v8, 2, {vJ}")
    a(f"v_mul_u32_u24 v8, {86*128}, v8")
    a(f"v_and_b32 v9, 3, {vJ}")
    a(f"v_lshl_add_u32 v8, v9, 5, v8")
    a(f"v_lshl_add_u32 v118, {vG}, 3, v8")
    a(f"s_mul_i32 {sT[11]}, {sW}, {4*86*128}")
    a(f"s_lshl_b32 {t0}, {sFS}, 7")
    a(f"s_add_u32 {sT[11]}, {sT[11]}, {t0}")
    a(f"s_add_u32 {sT[11]}, {sT[11]}, {H7}")
    a("s_waitcnt vmcnt(0) lgkmcnt(0)")
    for t in range(4):
        for q in range(2):
            a(f"v_lshlrev_b32 v{80+4*t+2*q}, 16, v{96+2*t+q}")
            a(f"v_and_b32 v{81+4*t+2*q}, 0xffff0000, v{96+2*t+q}")
    a("s_barrier")
    g.stamp("dd")
    def dma56():
        a(f"s_mov_b32 m0, {sT[10]}")
        a("s_nop 0")
        for t in range(4):
            a(f"buffer_load_dwordx4 v108, {sWS}, {sT[9]} offen offset:{t*1024} sc1 lds")
    dma56()
    for X in range(2):
        for u in range(2):
            for hf in range(2):
                a(f"ds_read_b64_tr_b16 {ar((X*2+u)*4+2*hf,2)}, v119 offset:{X*(WUI-WGI)+u*1024+hf*512}")
    for t in range(4):
        a(f"ds_read_b64_tr_b16 {ar(16+2*t,2)}, v120 offset:{t*32}")
    a("E_WAIT:")
    a("s_waitcnt vmcnt(0) lgkmcnt(0)")
    for t in range(4):
        a(f"ds_read_b64_tr_b16 {vr(64+4*t,2)}, v109 offset:{t*1024}")
        a(f"ds_read_b64_tr_b16 {vr(64+4*t+2,2)}, v109 offset:{t*1024+512}")
    a("v_mov_b32 v20, 0")
    for t in range(4):
        a(f"s_waitcnt lgkmcnt({2*(3-t)})")
        a(f"v_mfma_f32_16x16x32_bf16 {vr(32+4*t,4)}, {vr(64+4*t,4)}, v[104:107], {vr(80+4*t,4)}")
        for q in range(4):
            a(f"v_bitop3_b32 v20, v20, v{64+4*t+q}, {vVM} bitop3:0xf6")
    g.tagcheck_end("v20", "E_BAD")
    g.stamp("h56")
    a("v_add_f32 v16, v32, v33")
    a("v_mul_f32 v17, v32, v32")
    a("v_fmac_f32 v17, v33, v33")
    for r in range(2, 16):
        a(f"v_add_f32 v16, v16, v{32+r}")
        a(f"v_fmac_f32 v17, v{32+r}, v{32+r}")
    g.cross_rows(["v16", "v17"], ["v18", "v19"], "v_add_f32")
    a("ds_write_b64 v110, v[16:17]")
    for t in range(4):
        a(f"ds_write_b128 v117, {vr(32+4*t,4)} offset:{t*64}")
    a("s_waitcnt lgkmcnt(4)")
    a("s_barrier")
    a("ds_read_b128 v[16:19], v111")
    a("s_waitcnt lgkmcnt(0)")
    a("v_add_f32 v16, v16, v18")
    a("v_add_f32 v17, v17, v19")
    for sh in (8, 4):
        for r in range(2):
            a(f"v_add_f32_dpp v{16+r}, v{16+r}, v{16+r} row_ror:{sh} row_mask:0xf bank_mask:0xf")
    a("v_mul_f32 v16, 0x3b000000, v16")
    a("v_mul_f32 v17, 0x3b000000, v17")
    a("v_fma_f32 v17, -v16, v16, v17")
    a("v_add_f32 v17, 0x3727c5ac, v17")
    a("v_rsq_f32 v17, v17")
    a("v_mul_f32 v16, v16, v17")
    for r in range(16):
        a(f"v_fma_f32 v{64+r}, v{32+r}, v17, -v16")
    for t in range(4):
        a(f"v_cvt_pk_bf16_f32 v{48+2*t}, v{64+4*t}, v{65+4*t}")
        a(f"v_cvt_pk_bf16_f32 v{49+2*t}, v{66+4*t}, v{67+4*t}")
    for u in range(2):
        for X in range(2):
            c = "0" if u == 0 else vr(56+4*X, 4)
            a(f"v_mfma_f32_16x16x32_bf16 {vr(56+4*X,4)}, {ar((X*2+u)*4,4)}, {vr(48+4*u,4)}, {c}")
    a("ds_write_b128 v112, v[56:59]")
    a("ds_write_b128 v112, v[60:63] offset:16")
    a("s_waitcnt lgkmcnt(0)")
    a("s_barrier")
    a("ds_read_b128 v[64:67], v113")
    a("ds_read_b128 v[68:71], v113 offset:16")
    a("ds_read_b128 v[72:75], v113 offset:2048")
    a("ds_read_b128 v[76:79], v113 offset:2064")
    a("s_waitcnt lgkmcnt(0)")
    for r in range(8): a(f"v_add_f32 v{64+r}, v{64+r}, v{72+r}")
    for sh in (8, 4):
        for r in range(8):
            a(f"v_add_f32_dpp v{64+r}, v{64+r}, v{64+r} row_ror:{sh} row_mask:0xf bank_mask:0xf")
    for r in range(4): a(f"v_max_f32 v{64+r}, 0, v{64+r}")
    for r in range(4): a(f"v_mul_f32 v{64+r}, v{64+r}, v{68+r}")
    a("v_cvt_pk_bf16_f32 v16, v64, v65")
    a("v_cvt_pk_bf16_f32 v17, v66, v67")
    for t in range(4):
        a(f"v_mfma_f32_16x16x16_bf16 {vr(32+4*t,4)}, {ar(16+2*t,2)}, v[16:17], 0")
    for t in range(4):
        a(f"v_cvt_pk_bf16_f32 v{48+2*t}, v{32+4*t}, v{33+4*t}")
        a(f"v_cvt_pk_bf16_f32 v{49+2*t}, v{34+4*t}, v{35+4*t}")
    for t in range(1, 4):
        for q in range(2):
            a(f"v_mov_b32_dpp v{48+q}, v{48+2*t+q} quad_perm:[0,1,2,3] row_mask:0xf bank_mask:{hex(1<<t)}")
    a(f"v_bfi_b32 v48, {vC1}, {vMa}, v48")
    a(f"v_bfi_b32 v49, {vC1}, {vMb}, v49")
    a(f"buffer_store_dwordx2 v[48:49], v118, {sWS}, {sT[11]} offen sc1")
    a("s_branch E_END")
    a("E_BAD:")
    g.spin_check()
    dma56()
    a("s_branch E_WAIT")
    a("E_END:")

def phaseF(g):
    a = g.a
    t0, t1, t2 = sT[0], sT[1], sT[2]
    a(f"s_cmp_ge_u32 {sFS}, 32")
    a("s_cbranch_scc1 FIN")
    for k, add in ((0, 0), (1, 64)):
        a(f"s_lshl_b32 {t0}, {sW}, 3")
        a(f"s_add_u32 {t0}, {t0}, {add}")
        a(f"v_lshrrev_b32 v8, 3, {vL}")
        a(f"v_add_u32 v8, {t0}, v8")
        a(f"v_min_u32 v8, 85, v8")
        a(f"v_and_b32 v9, 7, {vL}")
        a(f"v_lshlrev_b32 v9, 4, v9")
        a(f"v_lshl_add_u32 v{96+k}, v8, 7, v9")
    a(f"s_mul_i32 {sT[9]}, {sFS}, {86*128}")
    a(f"s_add_u32 {sT[9]}, {sT[9]}, {H7}")
    a(f"s_lshl_b32 {sT[10]}, {sW}, 10")
    a(f"s_add_u32 {sT[10]}, {sT[10]}, {ST7}")
    a(f"v_add_u32 v98, {sT[10]}, {vLIN8}")
    a(f"v_mov_b32 v100, v104"); a(f"v_mov_b32 v101, v105")
    a(f"s_cmp_eq_u32 {sW}, 2")
    a(f"s_cselect_b32 {t0}, 2, 4")
    a(f"v_cmp_gt_u32 vcc, {t0}, {vG}")
    a(f"v_cndmask_b32 v102, 0, v104, vcc")
    a(f"v_cndmask_b32 v103, 0, v105, vcc")
    a(f"v_and_b32 v8, 3, {vJ}")
    a(f"v_lshlrev_b32 v9, 11, v8")
    a(f"v_lshl_add_u32 v9, {vG}, 4, v9")
    a(f"s_lshl_b32 {t0}, {sFS}, 6")
    a(f"s_add_u32 {t0}, {t0}, {HB}")
    a(f"v_add_u32 v99, {t0}, v9")
    a(f"v_lshlrev_b32 v9, 10, v8")
    a(f"v_lshl_add_u32 v9, {vG}, 3, v9")
    a(f"s_lshl_b32 {t0}, {sFS}, 5")
    a(f"v_add_u32 v108, {t0}, v9")
    a("s_waitcnt vmcnt(0)")
    a("s_barrier")
    g.stamp("ed")
    a("F_RETRY:")
    a(f"s_mov_b32 m0, {sT[10]}")
    a("s_nop 0")
    a(f"buffer_load_dwordx4 v96, {sWS}, {sT[9]} offen sc1 lds")
    lab = a.label("F1")
    a(f"s_cmp_ge_u32 {sW}, 3")
    a(f"s_cbranch_scc1 {lab}")
    a(f"s_add_u32 {t0}, {sT[10]}, 8192")
    a(f"s_mov_b32 m0, {t0}")
    a("s_nop 0")
    a(f"buffer_load_dwordx4 v97, {sWS}, {sT[9]} offen sc1 lds")
    a(f"{lab}:")
    a("v_mov_b32 v20, 0")
    a("s_waitcnt vmcnt(0)")
    a("ds_read_b64_tr_b16 v[64:65], v98")
    a("ds_read_b64_tr_b16 v[66:67], v98 offset:512")
    a("s_waitcnt lgkmcnt(0)")
    a("v_mfma_f32_16x16x32_bf16 v[16:19], v[64:67], v[104:107], 0")
    for q in range(4):
        a(f"v_bitop3_b32 v20, v20, v{64+q}, {vVM} bitop3:0xf6")
    lab2 = a.label("F2")
    a(f"s_cmp_ge_u32 {sW}, 3")
    a(f"s_cbranch_scc1 {lab2}")
    a("ds_read_b64_tr_b16 v[68:69], v98 offset:8192")
    a("ds_read_b64_tr_b16 v[70:71], v98 offset:8704")
    a("s_waitcnt lgkmcnt(0)")
    a("v_mfma_f32_16x16x32_bf16 v[16:19], v[68:71], v[100:103], v[16:19]")
    for q in range(4):
        a(f"v_bitop3_b32 v20, v20, v{68+q}, {vVM} bitop3:0xf6")
    a(f"{lab2}:")
    g.tagcheck_end("v20", "F_BAD")
    a("s_nop 7")
    a(f"ds_write_b128 {vRW}, v[16:19]")
    a("s_waitcnt lgkmcnt(0)")
    a("s_barrier")
    a(f"s_cmp_lg_u32 {sW}, 0")
    a("s_cbranch_scc1 FIN")
    a("ds_read_b128 v[24:27], v99")
    red_final(g, vRR, 16)
    for r in range(4): a(f"v_add_f32 v{16+r}, v{16+r}, v{24+r}")
    if getattr(g, "perturb", 0):
        import struct
        pv = hex(struct.unpack("<I", struct.pack("<f", g.perturb))[0])
        for r in range(4): a(f"v_add_f32 v{16+r}, {pv}, v{16+r}")
    a("v_cvt_pk_bf16_f32 v24, v16, v17")
    a("v_cvt_pk_bf16_f32 v25, v18, v19")
    a("s_mov_b32 exec_lo, 0x000f000f")
    a("s_mov_b32 exec_hi, 0x000f000f")
    a(f"buffer_store_dwordx2 v[24:25], v108, {sOUT}, 0 offen")
    a("s_mov_b64 exec, -1")
    lab3 = a.label("F3")
    a(f"s_cmp_lg_u32 {sFS}, 0")
    a(f"s_cbranch_scc1 {lab3}")
    a(f"s_add_u32 {t0}, {sE}, 1")
    a(f"v_mov_b32 v8, {t0}")
    a("v_mov_b32 v9, 0")
    a("s_mov_b64 exec, 1")
    a(f"buffer_store_dword v8, v9, {sWS}, 0 offen sc1")
    a("s_mov_b64 exec, -1")
    a(f"{lab3}:")
    a("s_branch FIN")
    a("F_BAD:")
    g.spin_check()
    a("s_branch F_RETRY")

def rest(g):
    a = g.a
    phaseB(g)
    def stop_here():
        a("s_waitcnt vmcnt(0)")
        a("s_branch FIN")
    if g.stop <= 3: stop_here()
    else:
        phaseC(g)
        if g.stop <= 4: stop_here()
        else:
            phaseD(g)
            if g.stop <= 5: stop_here()
            else:
                phaseE(g)
                if g.stop <= 6: stop_here()
                else:
                    phaseF(g)
    q_retry(g)
    g.loader()
    g.finish()
```

```python
from gen import *

vK, vVlo, vVhi, vQ0, vQ1, vCK0, vCK1 = "v96", "v97", "v98", "v99", "v100", "v101", "v102"
vMXw, vMXr, vPBw, vPBr, vVDw, vVDr, vOA, vOB, vST = "v103", "v104", "v105", "v106", "v107", "v108", "v109", "v110", "v111"
vWUV, vWO = "v112", "v113"
sO, sST = "s76", "s77"
sUVo, sUVm, sWOo, sWOm = sT[5], sT[6], sT[7], sT[8]

def b_addr(g, kwave):
    a = g.a; t0, t1 = sT[0], sT[1]
    if kwave:
        a(f"s_lshl_b32 {t0}, {sW}, 5")
        a(f"v_add_u32 v8, {t0}, {vJ}")
        a(f"v_mul_u32_u24 v8, {KVP}, v8")
        a(f"v_lshl_add_u32 {vK}, {vG}, 4, v8")
        a(f"v_lshrrev_b32 v8, 1, {vJ}")
        a(f"v_xor_b32 v8, v8, {vG}")
        a(f"v_lshlrev_b32 v9, 7, {vJ}")
        a(f"v_add_u32 v9, {QS}, v9")
        a(f"v_lshl_add_u32 {vQ0}, v8, 4, v9")
        a(f"v_xor_b32 v8, 4, v8")
        a(f"v_lshl_add_u32 {vQ1}, v8, 4, v9")
        a(f"s_lshl_b32 {t0}, {sW}, 12")
        a(f"s_add_u32 {t0}, {t0}, {QS}")
        a(f"v_lshlrev_b32 v9, 4, {vL}")
        a(f"v_add_u32 {vCK0}, {t0}, v9")
        a(f"v_lshlrev_b32 v8, 4, {vJ}")
        a(f"v_add_u32 {vMXr}, {MX}, v8")
        a(f"s_lshl_b32 {t0}, {sW}, 2")
        a(f"v_add_u32 {vMXw}, {t0}, {vMXr}")
        a(f"s_lshl_b32 {t0}, {sW}, 10")
        a(f"s_add_u32 {t0}, {t0}, {PB}")
        a(f"v_add_u32 {vPBw}, {t0}, v9")
        a(f"v_lshlrev_b32 {vST}, 4, {vJ}")
        a(f"s_lshl_b32 {sST}, {sCH}, 9")
        a(f"s_lshl_b32 {t0}, {sHG}, 8")
        a(f"s_add_u32 {sST}, {sST}, {t0}")
        a(f"s_add_u32 {sST}, {sST}, {STATS}")
        a(f"v_lshlrev_b32 v8, 2, {vL}")
        a(f"v_add_u32 v8, {MX}, v8")
        a(f"v_mov_b32 v9, -1")
        a(f"ds_write_b32 v8, v9")
        a(f"ds_write_b32 v8, v9 offset:512")
    else:
        a(f"v_lshrrev_b32 v8, 2, {vJ}")
        a(f"v_lshl_add_u32 v8, {vG}, 2, v8")
        a(f"v_mul_u32_u24 v8, {KVP}, v8")
        a(f"v_and_b32 v9, 3, {vL}")
        a(f"v_lshl_add_u32 v8, v9, 3, v8")
        a(f"s_sub_u32 {t1}, {sW}, 4")
        a(f"s_lshl_b32 {t0}, {t1}, 8")
        a(f"v_add_u32 {vVlo}, {t0}, v8")
        a(f"v_add_u32 {vVhi}, {64*KVP}, {vVlo}")
        a(f"v_lshlrev_b32 v8, 4, {vL}")
        a(f"v_add_u32 {vPBr}, {PB}, v8")
        a(f"v_and_b32 v8, 7, {vJ}")
        a(f"v_mul_u32_u24 v8, {8*H3P}, v8")
        a(f"v_lshrrev_b32 v9, 3, {vJ}")
        a(f"v_lshl_add_u32 v10, {vG}, 4, v8")
        a(f"v_lshl_add_u32 {vOA}, v9, 6, v10")
        a(f"v_xor_b32 v9, 1, v9")
        a(f"v_lshl_add_u32 {vOB}, v9, 6, v10")
        a(f"v_add_u32 {vOB}, {64*H3P}, {vOB}")
        a(f"s_mul_i32 {sO}, {sHG}, {128*H3P}")
        a(f"s_mul_i32 {t0}, {t1}, {2*H3P}")
        a(f"s_add_u32 {sO}, {sO}, {t0}")
        a(f"s_lshl_b32 {t0}, {sB}, 12")
        a(f"s_add_u32 {sO}, {sO}, {t0}")
        a(f"s_lshl_b32 {t0}, {sKC}, 7")
        a(f"s_add_u32 {sO}, {sO}, {t0}")
        a(f"s_add_u32 {sO}, {sO}, {H3}")
        a(f"s_add_u32 {sST}, {sO}, {H3P}")

def phaseB(g):
    a = g.a
    t0, t1 = sT[0], sT[1]
    a("s_waitcnt lgkmcnt(0)")
    a("s_barrier")
    g.stamp("x1")
    a(f"s_cmp_ge_u32 {sW}, 4")
    a("s_cbranch_scc1 B_V")
    n = 0
    for tl in range(2):
        for s in range(16):
            a(f"ds_read_b128 {ar((tl*16+s)*4,4)}, {vK} offset:{tl*16*KVP+s*64}")
            n += 1
            if n % 8 == 0: a("s_waitcnt lgkmcnt(6)")
    a("Q_CHECK:")
    a("s_waitcnt vmcnt(0)")
    g.stamp("qw")
    for nn in range(4):
        a(f"ds_read_b128 {vr(64+4*nn,4)}, {vCK0} offset:{nn*1024}")
    a("v_mov_b32 v20, 0")
    for nn in range(4):
        a(f"s_waitcnt lgkmcnt({3-nn})")
        for q in range(4):
            a(f"v_bitop3_b32 v20, v20, v{64+4*nn+q}, {sM[q]} bitop3:0xf6")
    g.tagcheck_end("v20", "Q_RETRY")
    a("s_barrier")
    g.stamp("x2")
    g.count("n_x2")
    def rd(s):
        a(f"ds_read_b128 {vr(64+4*(s%8),4)}, {vQ0 if s%2==0 else vQ1} offset:{(s>>1)*2048}")
    for s in range(8): rd(s)
    for s in range(16):
        a(f"s_waitcnt lgkmcnt({min(7,15-s)})")
        for tl in range(2):
            c = "0" if s == 0 else vr(16+4*tl, 4)
            a(f"v_mfma_f32_16x16x32_bf16 {vr(16+4*tl,4)}, {ar((tl*16+s)*4,4)}, {vr(64+4*(s%8),4)}, {c}")
        if s + 8 < 16: rd(s + 8)
    g.stamp("qk")
    a("v_max3_f32 v24, v16, v17, v18")
    a("v_max3_f32 v25, v19, v20, v21")
    a("v_max3_f32 v24, v24, v22, v23")
    a("v_max_f32 v24, v24, v25")
    g.cross_rows(["v24"], ["v25"], "v_max_f32")
    a(f"ds_write_b32 {vMXw}, v24")
    a("M_SPIN:")
    a(f"ds_read_b128 v[24:27], {vMXr}")
    g.spin_check()
    a("s_waitcnt lgkmcnt(0)")
    a("v_max3_u32 v28, v24, v25, v26")
    a("v_max_u32 v28, v28, v27")
    a("v_cmp_eq_u32 vcc, -1, v28")
    a("s_cbranch_vccnz M_SPIN")
    a("v_max3_f32 v24, v24, v25, v26")
    a("v_max_f32 v31, v24, v27")
    for r in range(8):
        a(f"v_sub_f32 v{16+r}, v{16+r}, v31")
    for r in range(8):
        a(f"v_exp_f32 v{16+r}, v{16+r}")
    g.stamp("mx")
    for q in range(4):
        a(f"v_cvt_pk_bf16_f32 v{24+q}, v{16+2*q}, v{17+2*q}")
    a(f"ds_write_b128 {vPBw}, v[24:27]")
    a("v_add_f32 v16, v16, v17"); a("v_add_f32 v18, v18, v19"); a("v_add_f32 v20, v20, v21"); a("v_add_f32 v22, v22, v23")
    a("v_add_f32 v16, v16, v18"); a("v_add_f32 v20, v20, v22")
    a("v_add_f32 v16, v16, v20")
    a("s_waitcnt lgkmcnt(0)")
    a("s_barrier")
    g.stamp("pb")
    g.cross_rows(["v16"], ["v17"], "v_add_f32")
    a(f"ds_write_b32 {vMXw}, v16 offset:512")
    lab = a.label("NOSTAT")
    a(f"s_cmp_lg_u32 {sW}, 0")
    a(f"s_cbranch_scc1 {lab}")
    a("L_SPIN:")
    a(f"ds_read_b128 v[24:27], {vMXr} offset:512")
    g.spin_check()
    a("s_waitcnt lgkmcnt(0)")
    a("v_max3_u32 v28, v24, v25, v26")
    a("v_max_u32 v28, v28, v27")
    a("v_cmp_eq_u32 vcc, -1, v28")
    a("s_cbranch_vccnz L_SPIN")
    a("v_add_f32 v24, v24, v25"); a("v_add_f32 v26, v26, v27")
    a("v_add_f32 v25, v24, v26")
    a("v_mov_b32 v24, v31")
    a(f"v_mov_b32 v26, {sT32}")
    a(f"v_mov_b32 v27, {sT32}")
    a("s_mov_b64 exec, 0xffff")
    a(f"buffer_store_dwordx4 v[24:27], {vST}, {sWS}, {sST} offen sc1")
    a("s_mov_b64 exec, -1")
    a(f"{lab}:")
    a("s_branch B_END")
    a("B_V:")
    n = 0
    for u in range(4):
        for t in range(8):
            for half in range(2):
                base = vVlo if u < 2 else vVhi
                off = (u & 1) * 32 * KVP + half * 16 * KVP + t * 32
                a(f"ds_read_b64_tr_b16 {ar((t*4+u)*4+2*half,2)}, {base} offset:{off}")
                n += 1
                if n % 8 == 0 and n < 64: a("s_waitcnt lgkmcnt(6)")
    a("s_waitcnt lgkmcnt(0)")
    a("s_barrier")
    import gen_tail
    gen_tail.uv_dma(g)
    a("s_barrier")
    for u in range(4):
        a(f"ds_read_b128 {vr(64+4*u,4)}, {vPBr} offset:{u*1024}")
    for u in range(4):
        a(f"s_waitcnt lgkmcnt({3-u})")
        for t in range(8):
            c = "0" if u == 0 else vr(32+4*t, 4)
            a(f"v_mfma_f32_16x16x32_bf16 {vr(32+4*t,4)}, {ar((t*4+u)*4,4)}, {vr(64+4*u,4)}, {c}")
    a("s_mov_b32 vcc_lo, 0x00ff00ff")
    a("s_mov_b32 vcc_hi, 0x00ff00ff")
    for jj in range(2):
        for t in range(4):
            tt = 4*jj + t
            a(f"v_cvt_pk_bf16_f32 v{64+2*tt}, v{32+4*tt}, v{33+4*tt}")
            a(f"v_cvt_pk_bf16_f32 v{65+2*tt}, v{34+4*tt}, v{35+4*tt}")
        for q in range(8):
            a(f"v_bfi_b32 v{64+8*jj+q}, {vC1}, {sM[q%4]}, v{64+8*jj+q}")
        for q in range(4):
            a(f"v_cndmask_b32_dpp v{80+4*jj+q}, v{68+8*jj+q}, v{64+8*jj+q}, vcc row_ror:8 row_mask:0xf bank_mask:0xf")
        a(f"buffer_store_dwordx4 {vr(80+4*jj,4)}, {vOA}, {sWS}, {sO if jj==0 else sST} offen sc1")
    a("s_not_b64 vcc, vcc")
    for jj in range(2):
        for q in range(4):
            a(f"v_cndmask_b32_dpp v{88+4*jj+q}, v{68+8*jj+q}, v{64+8*jj+q}, vcc row_ror:8 row_mask:0xf bank_mask:0xf")
        a(f"buffer_store_dwordx4 {vr(88+4*jj,4)}, {vOB}, {sWS}, {sO if jj==0 else sST} offen sc1")
    g.stamp("opub")
    a("B_END:")
    if getattr(g, "bar_op", 0): a("s_barrier")

def q_retry(g):
    a = g.a
    a("Q_RETRY:")
    g.spin_check()
    g.h2_issue()
    a("s_branch Q_CHECK")

def rest(g):
    import gen_tail
    a = g.a
    phaseB(g)
    gen_tail.tail(g)
    q_retry(g)
    g.loader()
    g.finish()
```

```python
from gen import *

C_WUV = 0; C_ST3 = 32768
D_WO = 0
E_WG = 0; E_WU = 32768; E_WD = 65536; E_ST = 99328; F_ST = 0
XP = PB
GX = QS + 8192
NFS = 43

vWUV, vTD = "v112", "v113"
sROLE = sAD
sUVo, sUVm = sT[5], sT[6]
vLIN8, vRW, vRR = "v116", "v114", "v115"

def roles(g):
    a = g.a; t0, t1, t2 = sT[0], sT[1], sT[2]
    a(f"s_sub_u32 {sMS}, {t1}, 16")
    a(f"s_mov_b32 {sHQ}, {t0}")
    a(f"s_mul_i32 {sFS}, {t0}, 6")
    a(f"s_add_u32 {sFS}, {sFS}, {t1}")
    a(f"s_sub_u32 {sFS}, {sFS}, 24")
    a(f"s_mov_b32 {sROLE}, 3")
    a(f"s_cmp_lt_u32 {sFS}, {NFS}")
    a(f"s_cselect_b32 {sROLE}, 2, {sROLE}")
    a(f"s_cmp_ge_u32 {t1}, 30")
    a(f"s_cselect_b32 {sROLE}, 3, {sROLE}")
    a(f"s_cmp_lt_u32 {t1}, 24")
    a(f"s_cselect_b32 {sROLE}, 1, {sROLE}")
    a(f"s_cmp_lt_u32 {t1}, 16")
    a(f"s_cselect_b32 {sROLE}, 0, {sROLE}")

def lane_swz128(g, dst, row_stride_log2):
    a = g.a
    a(f"v_lshrrev_b32 v8, 3, {vL}")
    a(f"v_lshlrev_b32 v8, {row_stride_log2}, v8")
    a(f"v_bfe_u32 v9, {vL}, 1, 2")
    a(f"v_xor_b32 v9, v9, {vG}")
    a(f"v_lshl_add_u32 v8, v9, 5, v8")
    a(f"v_and_b32 v9, 1, {vL}")
    a(f"v_lshl_add_u32 {dst}, v9, 4, v8")

def tr_base128(g, dst, sbase):
    a = g.a
    a(f"v_lshrrev_b32 v8, 2, {vJ}")
    a(f"v_lshl_add_u32 v8, {vG}, 2, v8")
    a(f"v_bfe_u32 v9, v8, 1, 2")
    a(f"v_lshlrev_b32 v9, 5, v9")
    a(f"v_lshl_add_u32 v9, v8, 7, v9")
    a(f"v_and_b32 v8, 3, {vL}")
    a(f"v_lshl_add_u32 v9, v8, 3, v9")
    a(f"v_add_u32 {dst}, {sbase}, v9")

def uv_dma_addr(g):
    a = g.a; t0, t1 = sT[0], sT[1]
    a(f"v_lshrrev_b32 v9, 1, {vJ}")
    a(f"v_xor_b32 v8, {vG}, v9")
    a(f"v_lshlrev_b32 v8, 5, v8")
    a(f"v_lshl_add_u32 v8, {vG}, 13, v8")
    a(f"v_and_b32 v9, 1, {vL}")
    a(f"v_lshl_add_u32 {vWUV}, v9, 4, v8")
    a(f"v_xor_b32 {vTD}, 128, {vWUV}")
    a(f"s_sub_u32 {t1}, {sW}, 4")
    a(f"s_lshl_b32 {sUVo}, {sI}, 7")
    a(f"s_lshl_b32 {t0}, {t1}, 5")
    a(f"s_add_u32 {sUVo}, {sUVo}, {t0}")
    a(f"s_lshl_b32 {sUVo}, {sUVo}, 13")
    a(f"s_lshl_b32 {t0}, {sH}, 8")
    a(f"s_add_u32 {sUVo}, {sUVo}, {t0}")
    a(f"s_lshl_b32 {sUVm}, {t1}, 13")
    a(f"s_add_u32 {sUVm}, {sUVm}, {C_WUV}")

def wo_addr(g):
    a = g.a; t0, t1, t2 = sT[0], sT[1], sT[2]
    lane_swz128(g, "v112", 10)
    a(f"s_sub_u32 {t2}, {sW}, 4")
    a(f"s_lshl_b32 {sUVo}, {t2}, 3")
    a(f"s_add_u32 {sUVo}, {sUVo}, {sHQ}")
    a(f"s_lshl_b32 {sUVo}, {sUVo}, 17")
    a(f"s_lshl_b32 {t1}, {sMS}, 7")
    a(f"s_add_u32 {sUVo}, {sUVo}, {t1}")
    a(f"s_lshl_b32 {sUVm}, {t2}, 14")
    a(f"s_add_u32 {sUVm}, {sUVm}, {D_WO}")

def wo_dma(g, n):
    a = g.a
    for _ in range(n):
        a(f"s_mov_b32 m0, {sUVm}")
        a(f"s_add_u32 {sUVm}, {sUVm}, 1024")
        a(f"buffer_load_dwordx4 v112, {sWO}, {sUVo} offen{g.nt} lds")
        a(f"s_add_u32 {sUVo}, {sUVo}, 8192")

def ffn_addr(g):
    a = g.a; t0, t1, t2 = sT[0], sT[1], sT[2]
    a(f"v_lshrrev_b32 v8, 2, {vL}")
    a(f"v_mul_u32_u24 v10, 2752, v8")
    a(f"v_bfe_u32 v8, v8, 2, 1")
    a(f"v_bfe_u32 v9, {vL}, 1, 1")
    a(f"v_xor_b32 v8, v8, v9")
    a(f"v_lshl_add_u32 v10, v8, 5, v10")
    a(f"v_and_b32 v9, 1, {vL}")
    a(f"v_lshl_add_u32 v112, v9, 4, v10")
    a(f"v_lshlrev_b32 v113, 4, {vL}")
    a(f"s_sub_u32 {t2}, {sW}, 4")
    a(f"s_mul_i32 {sUVo}, {t2}, {128*2752}")
    a(f"s_lshl_b32 {t1}, {sFS}, 6")
    a(f"s_add_u32 {sUVo}, {sUVo}, {t1}")
    a(f"s_lshl_b32 {sUVm}, {t2}, 13")
    a(f"s_add_u32 {sUVm}, {sUVm}, {E_WG}")

def gu_dma(g, n):
    a = g.a
    for _ in range(n):
        a(f"s_mov_b32 m0, {sUVm}")
        a(f"s_add_u32 {sT[3]}, {sUVm}, {E_WU-E_WG}")
        a(f"buffer_load_dwordx4 v112, {sWG}, {sUVo} offen{g.nt} lds")
        a(f"s_mov_b32 m0, {sT[3]}")
        a(f"s_add_u32 {sUVm}, {sUVm}, 1024")
        a(f"buffer_load_dwordx4 v112, {sWU}, {sUVo} offen{g.nt} lds")
        a(f"s_add_u32 {sUVo}, {sUVo}, {16*2752}")

def role_dma_addr(g):
    a = g.a
    l1, l2, l3 = a.label("RA"), a.label("RA"), a.label("RA")
    a(f"s_cmp_eq_u32 {sROLE}, 1")
    a(f"s_cbranch_scc1 {l1}")
    a(f"s_cmp_eq_u32 {sROLE}, 2")
    a(f"s_cbranch_scc1 {l2}")
    uv_dma_addr(g)
    a(f"s_branch {l3}")
    a(f"{l1}:")
    wo_addr(g)
    a(f"s_branch {l3}")
    a(f"{l2}:")
    ffn_addr(g)
    a(f"{l3}:")

def uv_pieces(g, n0, n1):
    a = g.a
    for nn in range(n0, n1):
        a(f"s_mov_b32 m0, {sUVm}")
        a(f"s_add_u32 {sUVm}, {sUVm}, 1024")
        a(f"buffer_load_dwordx4 {vWUV if nn < 4 else vTD}, {sWUV}, {sUVo} offen{g.nt} lds")
        a(f"s_add_u32 {sUVo}, {sUVo}, 32768")

def uv_dma(g):
    a = g.a
    l1, l2, l3 = a.label("RD"), a.label("RD"), a.label("RD")
    a(f"s_cmp_eq_u32 {sROLE}, 1")
    a(f"s_cbranch_scc1 {l1}")
    a(f"s_cmp_eq_u32 {sROLE}, 2")
    a(f"s_cbranch_scc1 {l2}")
    a(f"s_cmp_eq_u32 {sROLE}, 3")
    a(f"s_cbranch_scc1 {l3}")
    uv_pieces(g, 0, g.early_uv)
    a(f"s_branch {l3}")
    a(f"{l1}:")
    wo_dma(g, g.early_wo)
    a(f"s_branch {l3}")
    a(f"{l2}:")
    gu_dma(g, g.early_gu)
    a(f"{l3}:")

def sel_regs(g):
    a = g.a
    a(f"v_and_b32 v8, 3, {vJ}")
    a(f"v_and_b32 v9, 1, v8")
    a(f"v_lshlrev_b32 v9, 4, v9")
    a(f"v_mov_b32 v10, 0x3f80")
    a(f"v_lshlrev_b32 v10, v9, v10")
    a(f"v_cmp_gt_u32 vcc, 2, v8")
    a(f"v_cndmask_b32 v104, 0, v10, vcc")
    a(f"v_cndmask_b32 v105, v10, 0, vcc")
    a(f"v_mov_b32 v106, v104")
    a(f"v_mov_b32 v107, v105")

def dispatch(g):
    a = g.a
    a(f"s_cmp_eq_u32 {sROLE}, 1")
    a("s_cbranch_scc1 ROLE_D")
    a(f"s_cmp_eq_u32 {sROLE}, 2")
    a("s_cbranch_scc1 ROLE_E")
    a(f"s_cmp_eq_u32 {sROLE}, 3")
    a("s_cbranch_scc1 FIN")

def roleC(g):
    a = g.a
    t0, t1, t2 = sT[0], sT[1], sT[2]
    sBb, sCHh = sT[3], sT[4]
    a(f"s_and_b32 {sBb}, {sW}, 3")
    a(f"s_lshr_b32 {sCHh}, {sW}, 2")
    lab0 = a.label("C_NOST")
    a(f"s_cmp_ge_u32 {sW}, 4")
    a(f"s_cbranch_scc1 {lab0}")
    a(f"v_and_b32 v8, 31, {vL}")
    a(f"v_lshlrev_b32 v100, 9, v8")
    a(f"s_lshl_b32 {sT[9]}, {sBb}, 14")
    a(f"s_lshl_b32 {t0}, {sH}, 4")
    a(f"s_add_u32 {sT[9]}, {sT[9]}, {t0}")
    a(f"s_add_u32 {sT[9]}, {sT[9]}, {STATS}")
    a(f"buffer_load_dwordx4 v[16:19], v100, {sWS}, {sT[9]} offen sc1")
    a(f"s_branch {lab0}_b")
    a(f"{lab0}:")
    uv_pieces(g, g.early_uv, 8)
    a(f"{lab0}_b:")
    lane_swz128(g, "v101", 7)
    a(f"s_lshl_b32 {sT[10]}, {sH}, 2")
    a(f"s_add_u32 {sT[10]}, {sT[10]}, {sI}")
    a(f"s_lshl_b32 {sT[10]}, {sT[10]}, 1")
    a(f"s_add_u32 {sT[10]}, {sT[10]}, {sCHh}")
    a(f"s_mul_i32 {sT[10]}, {sT[10]}, {H3P}")
    a(f"s_lshl_b32 {t0}, {sBb}, 12")
    a(f"s_add_u32 {sT[10]}, {sT[10]}, {t0}")
    a(f"s_add_u32 {sT[10]}, {sT[10]}, {H3}")
    a(f"s_lshl_b32 {sT[11]}, {sW}, 12")
    a(f"s_add_u32 {sT[11]}, {sT[11]}, {C_ST3}")
    tr_base128(g, "v102", sT[11])
    for tau in range(1, 4):
        a(f"v_xor_b32 v{102+tau}, {tau*32}, v102")
    a(f"s_lshl_b32 {t1}, {sBb}, 6")
    a(f"s_add_u32 {t1}, {t1}, {AL}")
    a(f"v_and_b32 v8, 31, {vL}")
    a(f"v_lshl_add_u32 v106, v8, 1, {t1}")
    a(f"v_lshl_add_u32 v107, {vG}, 3, {t1}")
    a(f"v_and_b32 v8, 1, {vG}")
    a(f"v_lshrrev_b32 v9, 2, {vJ}")
    a(f"v_lshl_add_u32 v10, v8, 2, v9")
    a(f"v_lshlrev_b32 v10, 5, v10")
    a(f"v_lshl_add_u32 v9, v8, 4, v9")
    a(f"v_lshrrev_b32 v8, 1, {vG}")
    a(f"v_lshl_add_u32 v9, v8, 2, v9")
    a(f"v_lshl_add_u32 v10, v9, 8, v10")
    a(f"v_and_b32 v8, 3, {vL}")
    a(f"v_lshl_add_u32 v10, v8, 3, v10")
    a(f"s_lshl_b32 {t0}, {sCHh}, 7")
    a(f"v_xor_b32 v10, {t0}, v10")
    a(f"s_lshl_b32 {t0}, {sCHh}, 14")
    a(f"v_add_u32 v108, {t0}, v10")
    a(f"s_xor_b32 {t0}, {t0}, 16384")
    a(f"v_add_u32 v110, {t0}, v10")
    assert C_WUV == 0
    a(f"s_lshl_b32 {t0}, {sBb}, 1")
    a(f"s_add_u32 {t0}, {t0}, {sCHh}")
    a(f"s_lshl_b32 {t1}, {t0}, 7")
    a(f"s_add_u32 {t1}, {t1}, {XP}")
    a(f"v_lshl_add_u32 v111, {vG}, 5, {t1}")
    a(f"s_xor_b32 {t0}, {t0}, 1")
    a(f"s_lshl_b32 {t1}, {t0}, 7")
    a(f"s_add_u32 {t1}, {t1}, {XP}")
    a(f"v_lshl_add_u32 v112, {vG}, 5, {t1}")
    a(f"v_lshrrev_b32 v8, 2, {vJ}")
    a(f"v_lshlrev_b32 v8, 6, v8")
    a(f"v_lshl_add_u32 v109, {vG}, 4, v8")
    a(f"s_lshl_b32 {sT[12]}, {sH}, 2")
    a(f"s_add_u32 {sT[12]}, {sT[12]}, {sI}")
    a(f"s_lshl_b32 {sT[12]}, {sT[12]}, 2")
    a(f"s_add_u32 {sT[12]}, {sT[12]}, {sBb}")
    a(f"s_lshl_b32 {sT[12]}, {sT[12]}, 1")
    a(f"s_add_u32 {sT[12]}, {sT[12]}, {sCHh}")
    a(f"s_lshl_b32 {sT[12]}, {sT[12]}, 7")
    a(f"s_add_u32 {sT[12]}, {sT[12]}, {H4}")
    a(f"s_cmp_ge_u32 {sW}, 4")
    a("s_cbranch_scc1 C_ACK")
    a("C_STATS:")
    a("s_waitcnt vmcnt(0)")
    a(f"v_cmp_ne_u32 vcc, {sT32}, v18")
    a("s_cbranch_vccnz C_STATS_BAD")
    a("v_mov_b32 v20, v16")
    g.wave_allreduce(["v20"], ["v21"], "v_max_f32", skip32=True)
    a("v_sub_f32 v16, v16, v20")
    a("v_exp_f32 v16, v16")
    a("v_mul_f32 v20, v16, v17")
    g.wave_allreduce(["v20"], ["v21"], "v_add_f32", skip32=True)
    a("v_rcp_f32 v20, v20")
    a("v_mul_f32 v16, v16, v20")
    a("v_cvt_pk_bf16_f32 v16, v16, v16")
    a("ds_write_b16 v106, v16")
    g.stamp("al")
    g.count("n_st")
    a("C_ACK:")
    a("s_waitcnt vmcnt(0) lgkmcnt(0)")
    g.stamp("ack3")
    a("s_barrier")
    g.stamp("w1")
    def dma3():
        a(f"s_mov_b32 m0, {sT[11]}")
        a("s_nop 0")
        for i in range(4):
            a(f"buffer_load_dwordx4 v101, {sWS}, {sT[10]} offen offset:{i*1024} sc1 lds")
    dma3()
    a("ds_read_b64 v[24:25], v107")
    a("ds_read_b64 v[26:27], v107 offset:32")
    n = 2
    for tt in range(4):
        for hs in range(2):
            a(f"v_xor_b32 v8, {tt*32}, v{108 if hs == 0 else 110}")
            for u in range(2):
                for half in range(2):
                    a(f"ds_read_b64_tr_b16 {ar(((tt*2+hs)*2+u)*4+2*half,2)}, v8 offset:{u*8192+half*2048}")
        a("s_waitcnt lgkmcnt(6)")
    a("C_HAVE:")
    a("s_waitcnt vmcnt(0)")
    for tau in range(4):
        a(f"ds_read_b64_tr_b16 {vr(32+4*tau,2)}, v{102+tau}")
        a(f"ds_read_b64_tr_b16 {vr(32+4*tau+2,2)}, v{102+tau} offset:2048")
    a("v_mov_b32 v20, 0")
    for tau in range(4):
        a(f"s_waitcnt lgkmcnt({2*(3-tau)})")
        a(f"v_mfma_f32_16x16x32_bf16 {vr(48+4*tau,4)}, {vr(32+4*tau,4)}, v[24:27], 0")
        for q in range(4):
            a(f"v_bitop3_b32 v20, v20, v{32+4*tau+q}, {vVM} bitop3:0xf6")
    g.tagcheck_end("v20", "C_PAY_BAD")
    g.stamp("h3")
    g.count("n_h3")
    for tau in range(4):
        a(f"v_cvt_pk_bf16_f32 v{16+2*tau}, v{48+4*tau}, v{49+4*tau}")
        a(f"v_cvt_pk_bf16_f32 v{17+2*tau}, v{50+4*tau}, v{51+4*tau}")
    a("s_mov_b32 exec_lo, 0x00010001")
    a("s_mov_b32 exec_hi, 0x00010001")
    a("ds_write_b128 v111, v[16:19]")
    a("ds_write_b128 v111, v[20:23] offset:16")
    a("s_mov_b64 exec, -1")
    for u in range(2):
        for tt in range(4):
            c = "0" if u == 0 else vr(64+4*tt, 4)
            a(f"v_mfma_f32_16x16x32_bf16 {vr(64+4*tt,4)}, {ar(((tt*2+0)*2+u)*4,4)}, {vr(16+4*u,4)}, {c}")
    a("s_waitcnt lgkmcnt(0)")
    a("s_barrier")
    a("ds_read_b128 v[24:27], v112")
    a("ds_read_b128 v[28:31], v112 offset:16")
    for u in range(2):
        a(f"s_waitcnt lgkmcnt({1-u})")
        for tt in range(4):
            a(f"v_mfma_f32_16x16x32_bf16 {vr(64+4*tt,4)}, {ar(((tt*2+1)*2+u)*4,4)}, {vr(24+4*u,4)}, {vr(64+4*tt,4)}")
    a("s_mov_b32 exec_lo, 0x00ff00ff")
    a("s_mov_b32 exec_hi, 0x00ff00ff")
    for tt in range(4):
        a(f"v_cvt_pk_bf16_f32 v{32+2*tt}, v{64+4*tt}, v{65+4*tt}")
        a(f"v_cvt_pk_bf16_f32 v{33+2*tt}, v{66+4*tt}, v{67+4*tt}")
    for q in range(4):
        a(f"v_mov_b32_dpp v{32+q}, v{36+q} quad_perm:[0,1,2,3] row_mask:0xf bank_mask:0x2")
    for q in range(4):
        a(f"v_bfi_b32 v{32+q}, {vC1}, {sM[q]}, v{32+q}")
    a("s_mov_b32 exec_lo, 0x00110011")
    a("s_mov_b32 exec_hi, 0x00110011")
    a(f"buffer_store_dwordx4 v[32:35], v109, {sWS}, {sT[12]} offen sc1")
    a("s_mov_b64 exec, -1")
    g.stamp("cpub")
    a("s_branch FIN")
    a("C_STATS_BAD:")
    g.spin_check()
    a(f"buffer_load_dwordx4 v[16:19], v100, {sWS}, {sT[9]} offen sc1")
    a("s_branch C_STATS")
    a("C_PAY_BAD:")
    g.spin_check()
    dma3()
    a("s_branch C_HAVE")

def roleD(g):
    a = g.a
    t0, t1, t2 = sT[0], sT[1], sT[2]
    a("ROLE_D:")
    a(f"s_cmp_lt_u32 {sW}, 4")
    a("s_cbranch_scc1 D_LO")
    wo_dma(g, 16 - g.early_wo)
    a("s_waitcnt vmcnt(0)")
    a("s_barrier")
    a("s_barrier")
    a("s_branch FIN")
    a("D_LO:")
    a(f"v_lshrrev_b32 v8, 2, {vJ}")
    a(f"v_lshlrev_b32 v8, 10, v8")
    a(f"v_and_b32 v9, 3, {vJ}")
    a(f"v_lshl_add_u32 v8, v9, 8, v8")
    a(f"v_lshl_add_u32 v100, {vG}, 4, v8")
    a(f"s_lshl_b32 {sT[9]}, {sW}, 3")
    a(f"s_add_u32 {sT[9]}, {sT[9]}, {sHQ}")
    a(f"s_lshl_b32 {sT[9]}, {sT[9]}, 12")
    a(f"s_add_u32 {sT[9]}, {sT[9]}, {H4}")
    a(f"s_lshl_b32 {t0}, {sW}, 14")
    a(f"s_add_u32 {t0}, {t0}, {D_WO}")
    tr_base128(g, "v102", t0)
    for mt in range(1, 4):
        a(f"v_xor_b32 v{102+mt}, {mt*32}, v102")
    a(f"v_lshlrev_b32 v8, 4, {vL}")
    a(f"v_add_u32 {vRR}, {RED}, v8")
    a(f"s_lshl_b32 {t0}, {sW}, 10")
    a(f"v_add_u32 {vRW}, {t0}, {vRR}")
    a(f"v_lshrrev_b32 v8, 2, {vJ}")
    a(f"v_lshlrev_b32 v8, 10, v8")
    a(f"v_and_b32 v9, 3, {vJ}")
    a(f"v_lshl_add_u32 v8, v9, 5, v8")
    a(f"v_lshl_add_u32 v101, {vG}, 3, v8")
    a(f"s_lshl_b32 {sT[11]}, {sMS}, 5")
    a(f"s_add_u32 {sT[11]}, {sT[11]}, {sHQ}")
    a(f"s_lshl_b32 {sT[11]}, {sT[11]}, 7")
    a(f"s_add_u32 {sT[11]}, {sT[11]}, {H56}")
    a("s_barrier")
    g.stamp("dw")
    n = 0
    for mt in range(4):
        for k in range(4):
            for half in range(2):
                a(f"ds_read_b64_tr_b16 {ar((mt*4+k)*4+2*half,2)}, v{102+mt} offset:{k*4096+half*2048}")
        a("s_waitcnt lgkmcnt(6)")
    a("D_RETRY:")
    for k in range(4):
        a(f"buffer_load_dwordx4 {vr(64+4*k,4)}, v100, {sWS}, {sT[9]} offen offset:{k*64} sc1")
    g.spin_check()
    a("v_mov_b32 v20, 0")
    a("s_waitcnt vmcnt(0) lgkmcnt(0)")
    for k in range(4):
        for q in range(4):
            a(f"v_bitop3_b32 v20, v20, v{64+4*k+q}, {sM[q]} bitop3:0xf6")
    g.tagcheck_end("v20", "D_RETRY")
    g.stamp("h4")
    g.count("n_h4")
    for k in range(4):
        for mt in range(4):
            c = "0" if k == 0 else vr(32+4*mt, 4)
            a(f"v_mfma_f32_16x16x32_bf16 {vr(32+4*mt,4)}, {ar((mt*4+k)*4,4)}, {vr(64+4*k,4)}, {c}")
    for t in range(2):
        for r in range(4):
            a(f"v_add_f32_dpp v{48+4*t+r}, v{32+4*t+r}, v{32+4*t+r} row_ror:8 row_mask:0xf bank_mask:0x3")
    for t in range(2):
        for r in range(4):
            a(f"v_add_f32_dpp v{48+4*t+r}, v{40+4*t+r}, v{40+4*t+r} row_ror:8 row_mask:0xf bank_mask:0xc")
    for r in range(4):
        a(f"v_add_f32_dpp v{56+r}, v{48+r}, v{48+r} row_ror:12 row_mask:0xf bank_mask:0x5")
    for r in range(4):
        a(f"v_add_f32_dpp v{56+r}, v{52+r}, v{52+r} row_ror:4 row_mask:0xf bank_mask:0xa")
    a(f"ds_write_b128 {vRW}, v[56:59]")
    a("s_waitcnt lgkmcnt(0)")
    a("s_barrier")
    a(f"s_cmp_lg_u32 {sW}, 0")
    a("s_cbranch_scc1 FIN")
    for w in range(4):
        a(f"ds_read_b128 {vr(16+4*w,4)}, {vRR} offset:{w*1024}")
    a("s_waitcnt lgkmcnt(2)")
    for r in range(4): a(f"v_add_f32 v{16+r}, v{16+r}, v{20+r}")
    a("s_waitcnt lgkmcnt(0)")
    for r in range(4): a(f"v_add_f32 v{24+r}, v{24+r}, v{28+r}")
    for r in range(4): a(f"v_add_f32 v{16+r}, v{16+r}, v{24+r}")
    a("v_cvt_pk_bf16_f32 v24, v16, v17")
    a("v_cvt_pk_bf16_f32 v25, v18, v19")
    a(f"v_bfi_b32 v24, {vC1}, {vMa}, v24")
    a(f"v_bfi_b32 v25, {vC1}, {vMb}, v25")
    a(f"buffer_store_dwordx2 v[24:25], v101, {sWS}, {sT[11]} offen sc1")
    g.stamp("dpub")
    a("s_branch FIN")

def roleE(g):
    a = g.a
    t0, t1, t2 = sT[0], sT[1], sT[2]
    a("ROLE_E:")
    a(f"v_lshlrev_b32 {vLIN8}, 3, {vL}")
    lab = a.label("E_NOLD")
    a(f"s_cmp_lt_u32 {sW}, 4")
    a(f"s_cbranch_scc1 {lab}")
    gu_dma(g, 8 - g.early_gu)
    a(f"s_sub_u32 {t2}, {sW}, 4")
    a(f"s_lshl_b32 {t0}, {sFS}, 5")
    a(f"s_lshl_b32 {t1}, {t2}, 3")
    a(f"s_add_u32 {t0}, {t0}, {t1}")
    a(f"s_lshl_b32 {t0}, {t0}, 10")
    a(f"s_mul_i32 {t1}, {t1}, {KVP}")
    a(f"s_add_u32 {t1}, {t1}, {E_WD}")
    for nn in range(8):
        a(f"s_mov_b32 m0, {t1}")
        a(f"s_add_u32 {t1}, {t1}, {KVP}")
        a(f"buffer_load_dwordx4 v113, {sWD}, {t0} offen{g.nt} lds")
        a(f"s_add_u32 {t0}, {t0}, 1024")
    a(f"{lab}:")
    a(f"v_and_b32 v8, 3, {vJ}")
    a(f"v_lshlrev_b32 v8, 10, v8")
    a(f"v_lshl_add_u32 v8, {vG}, 3, v8")
    a(f"s_lshl_b32 {t0}, {sW}, 7")
    a(f"v_add_u32 v8, {t0}, v8")
    for t in range(4):
        a(f"buffer_load_dwordx2 {vr(96+2*t,2)}, v8, {sX}, 0 offen offset:{t*32}")
    sel_regs(g)
    a(f"v_lshrrev_b32 v8, 2, {vJ}")
    a(f"v_lshl_add_u32 v8, {vG}, 2, v8")
    a(f"v_bfe_u32 v9, v8, 2, 1")
    a(f"v_lshlrev_b32 v9, 5, v9")
    a(f"v_lshl_add_u32 v9, v8, 6, v9")
    a(f"v_and_b32 v8, 3, {vL}")
    a(f"v_lshl_add_u32 v9, v8, 3, v9")
    a(f"s_lshl_b32 {t0}, {sW}, 12")
    a(f"s_add_u32 {t0}, {t0}, {E_WG}")
    a(f"v_add_u32 v119, {t0}, v9")
    a(f"v_xor_b32 v121, 32, v119")
    a(f"v_lshrrev_b32 v9, 2, {vJ}")
    a(f"v_lshl_add_u32 v9, {vG}, 2, v9")
    a(f"v_mul_u32_u24 v9, {KVP}, v9")
    a(f"v_and_b32 v10, 3, {vL}")
    a(f"v_lshl_add_u32 v9, v10, 3, v9")
    a(f"s_lshl_b32 {t0}, {sW}, 7")
    a(f"s_add_u32 {t0}, {t0}, {E_WD}")
    a(f"v_add_u32 v120, {t0}, v9")
    a(f"s_lshl_b32 {sT[9]}, {sW}, 12")
    a(f"s_add_u32 {sT[10]}, {sT[9]}, {E_ST}")
    a(f"s_add_u32 {sT[9]}, {sT[9]}, {H56}")
    a(f"v_lshlrev_b32 v108, 4, {vL}")
    a(f"v_add_u32 v109, {sT[10]}, {vLIN8}")
    a(f"v_and_b32 v8, 3, {vJ}")
    a(f"v_lshlrev_b32 v8, 6, v8")
    a(f"s_lshl_b32 {t0}, {sW}, 3")
    a(f"s_add_u32 {t0}, {t0}, {MX}")
    a(f"v_add_u32 v110, {t0}, v8")
    a(f"v_lshrrev_b32 v9, 2, {vJ}")
    a(f"v_lshl_add_u32 v8, v9, 4, v8")
    a(f"v_add_u32 v111, {MX}, v8")
    a(f"v_and_b32 v8, 3, {vJ}")
    a(f"v_lshl_add_u32 v8, {vG}, 4, v8")
    a(f"v_lshlrev_b32 v8, 4, v8")
    a(f"s_lshr_b32 {t0}, {sW}, 2")
    a(f"s_lshl_b32 {t0}, {t0}, 10")
    a(f"s_and_b32 {t1}, {sW}, 3")
    a(f"s_lshl_b32 {t1}, {t1}, 6")
    a(f"s_add_u32 {t0}, {t0}, {t1}")
    a(f"s_add_u32 {t0}, {t0}, {GX}")
    a(f"v_add_u32 v112, {t0}, v8")
    a(f"v_lshlrev_b32 v8, 4, {vL}")
    a(f"v_add_u32 v113, {GX}, v8")
    a(f"v_add_u32 v117, {HB}, v8")
    a(f"v_lshrrev_b32 v8, 2, {vJ}")
    a(f"v_mul_u32_u24 v8, {NFS*128}, v8")
    a(f"v_and_b32 v9, 3, {vJ}")
    a(f"v_lshl_add_u32 v8, v9, 5, v8")
    a(f"v_lshl_add_u32 v118, {vG}, 3, v8")
    a(f"s_mul_i32 {sT[11]}, {sW}, {4*NFS*128}")
    a(f"s_lshl_b32 {t0}, {sFS}, 7")
    a(f"s_add_u32 {sT[11]}, {sT[11]}, {t0}")
    a(f"s_add_u32 {sT[11]}, {sT[11]}, {H7}")
    a("s_waitcnt vmcnt(0) lgkmcnt(0)")
    for t in range(4):
        for q in range(2):
            a(f"v_lshlrev_b32 v{80+4*t+2*q}, 16, v{96+2*t+q}")
            a(f"v_and_b32 v{81+4*t+2*q}, 0xffff0000, v{96+2*t+q}")
    a("s_barrier")
    g.stamp("ew")
    for X in range(2):
        for ft in range(2):
            for u in range(2):
                for hf in range(2):
                    a(f"ds_read_b64_tr_b16 {ar(((X*2+ft)*2+u)*4+2*hf,2)}, {'v119' if ft == 0 else 'v121'} offset:{X*(E_WU-E_WG)+u*2048+hf*1024}")
        a("s_waitcnt lgkmcnt(4)")
    for t in range(4):
        a(f"ds_read_b64_tr_b16 {ar(32+4*t,2)}, v120 offset:{t*32}")
        a(f"ds_read_b64_tr_b16 {ar(32+4*t+2,2)}, v120 offset:{16*KVP+t*32}")
    a("E_RETRY:")
    a(f"s_mov_b32 m0, {sT[10]}")
    g.spin_check()
    for t in range(4):
        a(f"buffer_load_dwordx4 v108, {sWS}, {sT[9]} offen offset:{t*1024} sc1 lds")
    a("s_waitcnt vmcnt(0) lgkmcnt(0)")
    for t in range(4):
        a(f"ds_read_b64_tr_b16 {vr(64+4*t,2)}, v109 offset:{t*1024}")
        a(f"ds_read_b64_tr_b16 {vr(64+4*t+2,2)}, v109 offset:{t*1024+512}")
    a("v_mov_b32 v20, 0")
    for t in range(4):
        a(f"s_waitcnt lgkmcnt({2*(3-t)})")
        a(f"v_mfma_f32_16x16x32_bf16 {vr(32+4*t,4)}, {vr(64+4*t,4)}, v[104:107], {vr(80+4*t,4)}")
        for q in range(4):
            a(f"v_bitop3_b32 v20, v20, v{64+4*t+q}, {vVM} bitop3:0xf6")
    g.tagcheck_end("v20", "E_RETRY")
    g.stamp("h56")
    g.count("n_h56")
    a("v_add_f32 v16, v32, v33")
    a("v_mul_f32 v17, v32, v32")
    a("v_fmac_f32 v17, v33, v33")
    for r in range(2, 16):
        a(f"v_add_f32 v16, v16, v{32+r}")
        a(f"v_fmac_f32 v17, v{32+r}, v{32+r}")
    g.cross_rows(["v16", "v17"], ["v18", "v19"], "v_add_f32")
    g.stamp("e1")
    a("s_mov_b64 exec, 0xf")
    a("ds_write_b64 v110, v[16:17]")
    a("s_mov_b64 exec, -1")
    a("s_waitcnt lgkmcnt(0)")
    a("s_barrier")
    g.stamp("eL")
    a("ds_read_b128 v[16:19], v111")
    a("s_waitcnt lgkmcnt(0)")
    a("v_add_f32 v16, v16, v18")
    a("v_add_f32 v17, v17, v19")
    for sh in (8, 4):
        for r in range(2):
            a(f"v_add_f32_dpp v{16+r}, v{16+r}, v{16+r} row_ror:{sh} row_mask:0xf bank_mask:0xf")
    a("v_mul_f32 v16, 0x3b000000, v16")
    a("v_mul_f32 v17, 0x3b000000, v17")
    a("v_fma_f32 v17, -v16, v16, v17")
    a("v_add_f32 v17, 0x3727c5ac, v17")
    a("v_rsq_f32 v17, v17")
    a("v_mul_f32 v16, v16, v17")
    for r in range(16):
        a(f"v_fma_f32 v{64+r}, v{32+r}, v17, -v16")
    for t in range(4):
        a(f"v_cvt_pk_bf16_f32 v{48+2*t}, v{64+4*t}, v{65+4*t}")
        a(f"v_cvt_pk_bf16_f32 v{49+2*t}, v{66+4*t}, v{67+4*t}")
    g.stamp("e2")
    for u in range(2):
        for X in range(2):
            for ft in range(2):
                d = 56 + 8*X + 4*ft
                c = "0" if u == 0 else vr(d, 4)
                a(f"v_mfma_f32_16x16x32_bf16 {vr(d,4)}, {ar(((X*2+ft)*2+u)*4,4)}, {vr(48+4*u,4)}, {c}")
    labh = a.label("E_NOH")
    a(f"s_lshr_b32 {t0}, {sFS}, 2")
    a(f"s_cmp_lg_u32 {t0}, {sW}")
    a(f"s_cbranch_scc1 {labh}")
    for t in range(4):
        a(f"ds_write_b128 v117, {vr(32+4*t,4)} offset:{t*1024}")
    a(f"{labh}:")
    a("s_mov_b32 exec_lo, 0x000f000f")
    a("s_mov_b32 exec_hi, 0x000f000f")
    for q in range(4):
        a(f"ds_write_b128 v112, {vr(56+4*q,4)} offset:{q*2048}")
    a("s_mov_b64 exec, -1")
    a("s_waitcnt lgkmcnt(0)")
    g.stamp("e3")
    a("s_barrier")
    g.stamp("eG")
    for q in range(4):
        a(f"ds_read_b128 {vr(64+4*q,4)}, v113 offset:{q*2048}")
        a(f"ds_read_b128 {vr(80+4*q,4)}, v113 offset:{q*2048+1024}")
    for q in range(4):
        a(f"s_waitcnt lgkmcnt({2*(3-q)})")
        for r in range(4): a(f"v_add_f32 v{64+4*q+r}, v{64+4*q+r}, v{80+4*q+r}")
    for sh in (8, 4):
        for r in range(16):
            a(f"v_add_f32_dpp v{64+r}, v{64+r}, v{64+r} row_ror:{sh} row_mask:0xf bank_mask:0xf")
    g.stamp("e4")
    for r in range(8): a(f"v_max_f32 v{64+r}, 0, v{64+r}")
    for r in range(8): a(f"v_mul_f32 v{64+r}, v{64+r}, v{72+r}")
    for q in range(4):
        a(f"v_cvt_pk_bf16_f32 v{16+q}, v{64+2*q}, v{65+2*q}")
    for t in range(4):
        a(f"v_mfma_f32_16x16x32_bf16 {vr(32+4*t,4)}, {ar(32+4*t,4)}, v[16:19], 0")
    for t in range(4):
        a(f"v_cvt_pk_bf16_f32 v{48+2*t}, v{32+4*t}, v{33+4*t}")
        a(f"v_cvt_pk_bf16_f32 v{49+2*t}, v{34+4*t}, v{35+4*t}")
    for t in range(1, 4):
        for q in range(2):
            a(f"v_mov_b32_dpp v{48+q}, v{48+2*t+q} quad_perm:[0,1,2,3] row_mask:0xf bank_mask:{hex(1<<t)}")
    a(f"v_bfi_b32 v48, {vC1}, {vMa}, v48")
    a(f"v_bfi_b32 v49, {vC1}, {vMb}, v49")
    a(f"buffer_store_dwordx2 v[48:49], v118, {sWS}, {sT[11]} offen sc1")
    g.stamp("epub")

def roleF(g):
    a = g.a
    t0, t1, t2 = sT[0], sT[1], sT[2]
    a(f"s_cmp_ge_u32 {sFS}, 32")
    a("s_cbranch_scc1 FIN")
    a(f"s_lshl_b32 {t0}, {sW}, 3")
    a(f"v_lshrrev_b32 v8, 3, {vL}")
    a(f"v_add_u32 v8, {t0}, v8")
    a(f"v_min_u32 v8, {NFS-1}, v8")
    a(f"v_and_b32 v9, 7, {vL}")
    a(f"v_lshlrev_b32 v9, 4, v9")
    a(f"v_lshl_add_u32 v96, v8, 7, v9")
    a(f"s_mul_i32 {sT[9]}, {sFS}, {NFS*128}")
    a(f"s_add_u32 {sT[9]}, {sT[9]}, {H7}")
    a(f"s_lshl_b32 {sT[10]}, {sW}, 10")
    a(f"s_add_u32 {sT[10]}, {sT[10]}, {F_ST}")
    a(f"v_add_u32 v98, {sT[10]}, {vLIN8}")
    a(f"s_cmp_eq_u32 {sW}, 5")
    a(f"s_cselect_b32 {t0}, 3, 4")
    a(f"s_cselect_b32 {t1}, 0, 4")
    a(f"v_cmp_gt_u32 vcc, {t0}, {vG}")
    a(f"v_cndmask_b32 v100, 0, v104, vcc")
    a(f"v_cndmask_b32 v101, 0, v105, vcc")
    a(f"v_cmp_gt_u32 vcc, {t1}, {vG}")
    a(f"v_cndmask_b32 v102, 0, v104, vcc")
    a(f"v_cndmask_b32 v103, 0, v105, vcc")
    a(f"v_and_b32 v8, 3, {vJ}")
    a(f"v_lshl_add_u32 v9, {vG}, 4, v8")
    a(f"v_lshlrev_b32 v9, 4, v9")
    a(f"s_lshr_b32 {t0}, {sW}, 2")
    a(f"s_lshl_b32 {t0}, {t0}, 10")
    a(f"s_and_b32 {t1}, {sW}, 3")
    a(f"s_lshl_b32 {t1}, {t1}, 6")
    a(f"s_add_u32 {t0}, {t0}, {t1}")
    a(f"s_add_u32 {t0}, {t0}, {RED}")
    a(f"v_add_u32 {vRW}, {t0}, v9")
    a(f"v_lshlrev_b32 v10, 4, {vL}")
    a(f"v_add_u32 {vRR}, {RED}, v10")
    a(f"s_and_b32 {t0}, {sFS}, 3")
    a(f"s_lshl_b32 {t0}, {t0}, 10")
    a(f"s_add_u32 {t0}, {t0}, {HB}")
    a(f"v_add_u32 v99, {t0}, v9")
    a(f"v_lshlrev_b32 v9, 10, v8")
    a(f"v_lshl_add_u32 v9, {vG}, 3, v9")
    a(f"s_lshl_b32 {t0}, {sFS}, 5")
    a(f"v_add_u32 v108, {t0}, v9")
    for r in range(4): a(f"v_mov_b32 v{16+r}, 0")
    a("s_waitcnt vmcnt(0)")
    a("s_barrier")
    g.stamp("ed")
    a(f"s_cmp_ge_u32 {sW}, 6")
    a("s_cbranch_scc1 F_RED")
    a("F_RETRY:")
    a(f"s_mov_b32 m0, {sT[10]}")
    g.spin_check()
    a(f"buffer_load_dwordx4 v96, {sWS}, {sT[9]} offen sc1 lds")
    a("v_mov_b32 v20, 0")
    a("s_waitcnt vmcnt(0)")
    a("ds_read_b64_tr_b16 v[64:65], v98")
    a("ds_read_b64_tr_b16 v[66:67], v98 offset:512")
    a("s_waitcnt lgkmcnt(0)")
    a("v_mfma_f32_16x16x32_bf16 v[16:19], v[64:67], v[100:103], 0")
    for q in range(4):
        a(f"v_bitop3_b32 v20, v20, v{64+q}, {vVM} bitop3:0xf6")
    g.tagcheck_end("v20", "F_RETRY")
    g.stamp("h7")
    a("F_RED:")
    a("s_nop 7")
    a("s_mov_b32 exec_lo, 0x000f000f")
    a("s_mov_b32 exec_hi, 0x000f000f")
    a(f"ds_write_b128 {vRW}, v[16:19]")
    a("s_mov_b64 exec, -1")
    a("s_waitcnt lgkmcnt(0)")
    a("s_barrier")
    a(f"s_cmp_lg_u32 {sW}, 0")
    a("s_cbranch_scc1 FIN")
    a("ds_read_b128 v[24:27], v99")
    a(f"ds_read_b128 v[16:19], {vRR}")
    a(f"ds_read_b128 v[20:23], {vRR} offset:1024")
    a("s_waitcnt lgkmcnt(0)")
    for r in range(4): a(f"v_add_f32 v{16+r}, v{16+r}, v{20+r}")
    for sh in (8, 4):
        for r in range(4):
            a(f"v_add_f32_dpp v{16+r}, v{16+r}, v{16+r} row_ror:{sh} row_mask:0xf bank_mask:0xf")
    for r in range(4): a(f"v_add_f32 v{16+r}, v{16+r}, v{24+r}")
    if getattr(g, "perturb", 0):
        import struct
        pv = hex(struct.unpack("<I", struct.pack("<f", g.perturb))[0])
        for r in range(4): a(f"v_add_f32 v{16+r}, {pv}, v{16+r}")
    a("v_cvt_pk_bf16_f32 v24, v16, v17")
    a("v_cvt_pk_bf16_f32 v25, v18, v19")
    a("s_mov_b32 exec_lo, 0x000f000f")
    a("s_mov_b32 exec_hi, 0x000f000f")
    a(f"buffer_store_dwordx2 v[24:25], v108, {sOUT}, 0 offen")
    a("s_mov_b64 exec, -1")
    lab3 = a.label("F3")
    a(f"s_cmp_lg_u32 {sFS}, 0")
    a(f"s_cbranch_scc1 {lab3}")
    a(f"s_add_u32 {t0}, {sE}, 1")
    a(f"v_mov_b32 v8, {t0}")
    a("v_mov_b32 v9, 0")
    a("s_mov_b64 exec, 1")
    a(f"buffer_store_dword v8, v9, {sWS}, 0 offen sc1")
    a("s_mov_b64 exec, -1")
    a(f"{lab3}:")
    a("s_branch FIN")

def tail(g):
    dispatch(g)
    roleC(g)
    roleD(g)
    roleE(g)
    roleF(g)
```

```python
import sys, math
sys.path.insert(0, 'gen')
from asmgen import Asm

KNAME = "sequential_preLN__compressed_kv_cla__glu_gated_reglu__decode_kernel"

WS_EPOCH = 0
H1   = 0x10000
H2   = 0x30000
STATS= 0x50000
H4   = 0x60000
H56  = 0xA0000
H7   = 0xB0000
H3   = 0x200000
H3P  = 16384 + 384
DBGT = 0x800000
WS_BYTES = 268435456

KVP = 1056
QS   = 135168
XN   = QS + 16384
PB   = XN + 4352
MX   = PB + 4096
LS   = MX + 512
VD   = LS + 512
FLAG = VD + 32
AL   = FLAG + 32
LDS_BYTES = 163840
assert AL + 256 <= LDS_BYTES
WUV = 0; WO = 16384; WGI = 32768; WUI = 49152; WDI = 65536
ST3 = 82432; ST56 = 98816; ST7 = ST3
HB = QS
RED = PB

sX, sCKV, sWQ, sWUK, sWUV, sWO, sWG, sWU, sWD, sOUT, sWS = [f"s[{4*i}:{4*i+3}]" for i in range(1, 12)]
sW = "s48"; sE = "s49"; sM = ["s50", "s51", "s52", "s53"]; sT32 = "s54"
sH = "s55"; sI = "s56"; sB = "s57"; sHG = "s58"; sKC = "s59"; sCH = "s60"; sMS = "s61"; sHQ = "s62"; sFS = "s63"
sT = [f"s{i}" for i in range(64, 78)]
sCNT = "s78"; sAD = "s79"

vL, vJ, vG = "v1", "v2", "v3"
vVM, vMa, vMb, vC1 = "v4", "v5", "v6", "v7"

def vr(a, n=1):
    return f"v{a}" if n == 1 else f"v[{a}:{a+n-1}]"
def ar(a, n=1):
    return f"a{a}" if n == 1 else f"a[{a}:{a+n-1}]"

class Gen:
    def __init__(self, stop=99, stamps=False, nt=True, TH=8, N1=8, spin=400000):
        self.a = Asm(); self.stop = stop; self.stamps = stamps
        self.nt = " nt" if nt else ""
        self.TH = TH; self.N1 = N1; self.spin = spin
        self.nstamp = 0

    def count(self, name):
        if not self.stamps or name not in self.stamps: return
        idx = self.stamps.index(name)
        self.a(f"s_mov_b32 s{80+2*idx}, {sCNT}")
        self.a(f"s_mov_b32 s{81+2*idx}, 0x7fffffff")

    def stamp(self, name):
        if not self.stamps or name not in self.stamps: return
        idx = self.stamps.index(name)
        a = self.a
        a(f"s_memrealtime s[{80+2*idx}:{81+2*idx}]")
        a("s_waitcnt lgkmcnt(0)")

    def spin_check(self, fail_label="FAIL"):
        a = self.a
        a(f"s_add_u32 {sCNT}, {sCNT}, 1")
        a(f"s_cmp_gt_u32 {sCNT}, {self.spin}" if self.spin < 65536 else f"s_cmp_gt_u32 {sCNT}, {hex(self.spin)}")
        a(f"s_cbranch_scc1 {fail_label}")

    def tagcheck_end(self, acc, retry_label):
        a = self.a
        a(f"v_and_b32 {acc}, {vC1}, {acc}")
        a(f"v_cmp_ne_u32 vcc, 0, {acc}")
        a(f"s_cbranch_vccnz {retry_label}")

    def wave_allreduce(self, regs, tmps, op, rows_only=False, skip32=False):
        a = self.a
        for sh in (1, 2, 4, 8):
            for r in regs:
                a(f"{op}_dpp {r}, {r}, {r} row_ror:{sh} row_mask:0xf bank_mask:0xf")
        self.cross_rows(regs, tmps, op, skip32)

    def cross_rows(self, regs, tmps, op, skip32=False):
        a = self.a
        for r, t in zip(regs, tmps):
            a(f"v_mov_b32 {t}, {r}")
        for r, t in zip(regs, tmps):
            a(f"v_permlane16_swap_b32 {t}, {r}")
        for r, t in zip(regs, tmps):
            a(f"{op} {r}, {r}, {t}")
        if skip32: return
        for r, t in zip(regs, tmps):
            a(f"v_mov_b32 {t}, {r}")
        for r, t in zip(regs, tmps):
            a(f"v_permlane32_swap_b32 {t}, {r}")
        for r, t in zip(regs, tmps):
            a(f"{op} {r}, {r}, {t}")

    def prologue(self):
        a = self.a
        a("s_cmp_ge_u32 s2, 256")
        a("s_cbranch_scc1 END")
        for i, off in enumerate([0, 8, 16, 24, 32, 40, 56, 64, 72, 80, 96]):
            a(f"s_load_dwordx2 s[{4*(i+1)}:{4*(i+1)+1}], s[0:1], {off}")
        sizes = [4096, 16777216, 4194304, 4194304, 4194304, 4194304, 1409024, 1409024, 1409024, 4096, WS_BYTES]
        for i, sz in enumerate(sizes):
            a(f"s_mov_b32 s{4*(i+1)+2}, {hex(sz)}")
            a(f"s_mov_b32 s{4*(i+1)+3}, 0x20000")
        a(f"v_readfirstlane_b32 {sW}, v0")
        a(f"v_and_b32 {vL}, 63, v0")
        a(f"v_and_b32 {vJ}, 15, v0")
        a(f"s_lshr_b32 {sW}, {sW}, 6")
        a(f"v_lshrrev_b32 {vG}, 4, {vL}")
        a(f"v_mov_b32 {vC1}, 0x10001")
        for r_ in (14, 15, 112, 113):
            a(f"v_mov_b32 v{r_}, 0")
        t0, t1 = sT[0], sT[1]
        a(f"s_and_b32 {t0}, s2, 7")
        a(f"s_lshr_b32 {t1}, s2, 3")
        a(f"s_and_b32 {sH}, {t1}, 3")
        a(f"s_lshl_b32 {sH}, {sH}, 3")
        a(f"s_add_u32 {sH}, {sH}, {t0}")
        a(f"s_lshr_b32 {sI}, {t1}, 2")
        a(f"s_and_b32 {sHG}, {t1}, 1")
        a(f"s_lshr_b32 {sCH}, {t1}, 1")
        a(f"s_lshl_b32 {sCH}, {sCH}, 3")
        a(f"s_add_u32 {sCH}, {sCH}, {t0}")
        a(f"s_lshr_b32 {sB}, {sCH}, 5")
        a(f"s_and_b32 {sKC}, {sCH}, 31")
        import gen_tail
        gen_tail.roles(self)
        a(f"s_mov_b32 {sCNT}, 0")
        a("s_waitcnt lgkmcnt(0)")
        a(f"s_load_dword {sE}, s[44:45], {WS_EPOCH}")
        self.stamp_noW(0)
        a(f"s_cmp_ge_u32 {sW}, 4")
        a("s_cbranch_scc1 LOADER")

    def stamp_noW(self, idx):
        if not self.stamps: return
        self.a(f"s_memrealtime s[80:81]")
        for i in range(1, 10):
            self.a(f"s_mov_b64 s[{80+2*i}:{81+2*i}], 0")

    def tags(self):
        a = self.a
        t0, t1 = sT[0], sT[1]
        a(f"s_and_b32 {sM[0]}, {sE}, 1")
        a(f"s_bfe_u32 {t0}, {sE}, 0x10001")
        a(f"s_lshl_b32 {t0}, {t0}, 16")
        a(f"s_or_b32 {sM[0]}, {sM[0]}, {t0}")
        a(f"s_bfe_u32 {sM[1]}, {sE}, 0x10002")
        a(f"s_bfe_u32 {t0}, {sE}, 0x10003")
        a(f"s_lshl_b32 {t0}, {t0}, 16")
        a(f"s_or_b32 {sM[1]}, {sM[1]}, {t0}")
        a(f"s_xor_b32 {sM[2]}, {sM[0]}, 0x10001")
        a(f"s_xor_b32 {sM[3]}, {sM[1]}, 0x10001")
        a(f"s_mul_i32 {sT32}, {sE}, 0x9e3779b1")
        a(f"s_add_u32 {sT32}, {sT32}, 0x7f4a7c15")
        a(f"v_and_b32 v8, 1, {vG}")
        a(f"v_cmp_ne_u32 vcc, 0, v8")
        a(f"v_mov_b32 v9, {sM[0]}")
        a(f"v_mov_b32 v10, {sM[2]}")
        a(f"v_cndmask_b32 {vMa}, v9, v10, vcc")
        a(f"v_mov_b32 v11, {sM[1]}")
        a(f"v_mov_b32 v12, {sM[3]}")
        a(f"v_cndmask_b32 {vMb}, v11, v12, vcc")
        a(f"v_and_b32 v8, 2, {vL}")
        a(f"v_cmp_ne_u32 vcc, 0, v8")
        a(f"v_cndmask_b32 v13, v9, v11, vcc")
        a(f"v_cndmask_b32 v14, v10, v12, vcc")
        a(f"v_and_b32 v8, 4, {vL}")
        a(f"v_cmp_ne_u32 vcc, 0, v8")
        a(f"v_cndmask_b32 v13, v13, v14, vcc")
        a(f"v_and_b32 v8, 1, {vL}")
        a(f"v_lshlrev_b32 v8, 4, v8")
        a(f"v_lshrrev_b32 v13, v8, v13")
        a(f"v_and_b32 v13, 1, v13")
        a(f"v_mul_u32_u24 {vVM}, {vC1}, v13")

    def loader(self):
        a = self.a
        a("LOADER:")
        t0, sM0, sOff = sT[0], sT[1], sT[2]
        a(f"s_sub_u32 {t0}, {sW}, 4")
        a(f"s_lshl_b32 {t0}, {t0}, 5")
        a(f"s_mul_i32 {sM0}, {t0}, {KVP}")
        a(f"s_lshl_b32 {sOff}, {t0}, 10")
        a(f"s_lshl_b32 {t0}, {sCH}, 17")
        a(f"s_add_u32 {sOff}, {sOff}, {t0}")
        a(f"v_lshlrev_b32 v8, 4, {vL}")
        a("s_barrier")
        for n in range(32):
            a(f"s_mov_b32 m0, {sM0}")
            a(f"s_add_u32 {sM0}, {sM0}, {KVP}")
            a(f"buffer_load_dwordx4 v8, {sCKV}, {sOff} offen{self.nt} lds")
            a(f"s_add_u32 {sOff}, {sOff}, 1024")
            if n >= self.TH and n < 31:
                a(f"s_waitcnt vmcnt({self.TH})")
        a("s_waitcnt lgkmcnt(0)")
        self.tags()
        self.b_hook(False)
        if self.stop > 2:
            import gen_tail
            gen_tail.role_dma_addr(self)
        a("s_waitcnt vmcnt(0)")
        self.stamp("ckv")
        a("s_branch JOIN_X1")

    def phaseA(self):
        a = self.a
        nt = self.nt
        t0, t1, t2 = sT[0], sT[1], sT[2]
        a(f"v_lshlrev_b32 v8, 4, v0")
        a(f"buffer_load_dwordx4 v[16:19], v8, {sX}, 0 offen")
        a(f"v_lshrrev_b32 v9, 3, {vL}")
        a(f"v_lshlrev_b32 v9, 13, v9")
        a(f"v_bfe_u32 v10, {vL}, 1, 2")
        a(f"v_xor_b32 v10, v10, {vG}")
        a(f"v_lshl_add_u32 v9, v10, 5, v9")
        a(f"v_and_b32 v10, 1, {vL}")
        a(f"v_lshl_add_u32 v9, v10, 4, v9")
        a(f"s_lshr_b32 {t0}, {sI}, 1")
        a(f"s_lshl_b32 {t0}, {t0}, 20")
        a(f"s_lshl_b32 {t1}, {sW}, 18")
        a(f"s_add_u32 {t0}, {t0}, {t1}")
        a(f"s_lshl_b32 {t1}, {sH}, 8")
        a(f"s_add_u32 {t0}, {t0}, {t1}")
        a(f"s_and_b32 {t1}, {sI}, 1")
        a(f"s_lshl_b32 {t1}, {t1}, 7")
        a(f"s_add_u32 {t0}, {t0}, {t1}")
        a(f"s_lshl_b32 {t2}, {sW}, 12")
        a(f"s_add_u32 {t2}, {t2}, {QS}")
        for n in range(4):
            a(f"s_mov_b32 m0, {t2}")
            a(f"s_add_u32 {t2}, {t2}, 1024")
            a(f"buffer_load_dwordx4 v9, {sWQ}, {t0} offen{nt} lds")
            if n < 3: a(f"s_add_u32 {t0}, {t0}, 65536")
        a(f"v_mov_b32 v12, {FLAG}")
        a("v_mov_b32 v20, 0"); a("v_mov_b32 v21, 0"); a("v_mov_b32 v22, 0"); a("v_mov_b32 v23, 0")
        a("ds_write_b128 v12, v[20:23]")
        a("ds_write_b32 v12, v20 offset:16")
        a("s_waitcnt lgkmcnt(0)")
        a("s_barrier")
        a(f"v_lshrrev_b32 v10, 2, {vL}")
        a(f"v_lshlrev_b32 v10, 6, v10")
        a(f"v_and_b32 v11, 1, {vL}")
        a(f"v_lshl_add_u32 v10, v11, 5, v10")
        a(f"v_bfe_u32 v11, {vL}, 1, 1")
        a(f"v_lshl_add_u32 v10, v11, 3, v10")
        a(f"s_mul_i32 {t1}, {sW}, 1088")
        a(f"s_add_u32 {t1}, {t1}, {XN}")
        a(f"v_add_u32 v10, {t1}, v10")
        a(f"v_bfe_u32 v11, {vJ}, 2, 2")
        a(f"v_lshl_add_u32 v11, {vG}, 2, v11")
        a(f"v_bfe_u32 v13, v11, 1, 2")
        a(f"v_xor_b32 v13, {sW}, v13")
        a(f"v_lshlrev_b32 v13, 5, v13")
        a(f"v_lshl_add_u32 v8, v11, 7, v13")
        a(f"v_and_b32 v13, 3, {vL}")
        a(f"v_lshl_add_u32 v8, v13, 3, v8")
        a(f"v_add_u32 v8, {QS}, v8")
        a(f"v_and_b32 v9, 3, {vJ}")
        a(f"v_mul_u32_u24 v9, 1088, v9")
        a(f"v_lshl_add_u32 v9, {vG}, 4, v9")
        a(f"s_lshr_b32 {t1}, {sI}, 1")
        a(f"s_lshl_b32 {t1}, {t1}, 8")
        a(f"s_add_u32 {t1}, {t1}, {XN}")
        a(f"v_add_u32 v9, {t1}, v9")
        t3 = sT[5]
        a(f"v_lshlrev_b32 v14, 5, {vJ}")
        a(f"v_lshl_add_u32 v14, {vG}, 3, v14")
        a(f"s_lshl_b32 {t3}, {sH}, 3")
        a(f"s_and_b32 {t1}, {sI}, 1")
        a(f"s_lshl_b32 {t1}, {t1}, 2")
        a(f"s_add_u32 {t3}, {t3}, {t1}")
        a(f"s_lshr_b32 {t1}, {sI}, 1")
        a(f"s_add_u32 {t3}, {t3}, {t1}")
        a(f"s_lshl_b32 {t3}, {t3}, 2")
        a(f"s_add_u32 {t3}, {t3}, {sW}")
        a(f"s_lshl_b32 {t3}, {t3}, 7")
        a(f"s_add_u32 {t3}, {t3}, {H1}")
        scale = (128 ** -0.5) * math.log2(math.e)
        import struct
        sc = struct.unpack("<I", struct.pack("<f", scale))[0]
        a(f"v_mov_b32 v15, {hex(sc)}")
        a("s_waitcnt vmcnt(4)")
        self.stamp("xl")
        for k in range(4):
            a(f"v_lshlrev_b32 v{20+2*k}, 16, v{16+k}")
            a(f"v_and_b32 v{21+2*k}, 0xffff0000, v{16+k}")
        a("v_add_f32 v28, v20, v21")
        a("v_mul_f32 v29, v20, v20")
        a("v_fmac_f32 v29, v21, v21")
        for k in range(2, 8):
            a(f"v_add_f32 v28, v28, v{20+k}")
            a(f"v_fmac_f32 v29, v{20+k}, v{20+k}")
        self.wave_allreduce(["v28", "v29"], ["v30", "v31"], "v_add_f32")
        a("v_mul_f32 v28, 0x3b000000, v28")
        a("v_mul_f32 v29, 0x3b000000, v29")
        a("v_fma_f32 v29, -v28, v28, v29")
        a("v_add_f32 v29, 0x3727c5ac, v29")
        a("v_rsq_f32 v29, v29")
        a("v_mul_f32 v28, v28, v29")
        for k in range(8):
            a(f"v_fma_f32 v{20+k}, v{20+k}, v29, -v28")
        for k in range(4):
            a(f"v_cvt_pk_bf16_f32 v{16+k}, v{20+2*k}, v{21+2*k}")
        a("ds_write_b64 v10, v[16:17]")
        a("ds_write_b64 v10, v[18:19] offset:16")
        a("s_waitcnt lgkmcnt(0)")
        a(f"v_mov_b32 v32, v8"); a(f"v_mov_b32 v33, v9"); a("v_mov_b32 v34, v14")
        self.tags()
        a(f"s_lshl_b32 {t1}, {sW}, 2")
        a(f"s_add_u32 {t1}, {t1}, {FLAG}")
        a(f"v_mov_b32 v12, {t1}")
        a(f"v_mov_b32 v13, 1")
        a(f"v_mov_b32 v11, {FLAG}")
        self.stamp("ln")
        a("s_waitcnt vmcnt(0)")
        a("ds_write_b32 v12, v13")
        self.stamp("wq")
        a("A_RDY:")
        a("ds_read_b128 v[16:19], v11")
        self.spin_check()
        a("s_waitcnt lgkmcnt(0)")
        a("v_and_b32 v16, v16, v17")
        a("v_and_b32 v18, v18, v19")
        a("v_and_b32 v16, v16, v18")
        a("v_cmp_eq_u32 vcc, 0, v16")
        a("s_cbranch_vccnz A_RDY")
        self.stamp("rdy")
        for s_ in range(4):
            a(f"ds_read_b64_tr_b16 {vr(64+4*s_,2)}, v32 offset:{s_*4096}")
            a(f"ds_read_b64_tr_b16 {vr(64+4*s_+2,2)}, v32 offset:{s_*4096+2048}")
            a(f"ds_read_b128 {vr(80+4*s_,4)}, v33 offset:{s_*64}")
        for s_ in range(4):
            a(f"s_waitcnt lgkmcnt({3*(3-s_)})")
            c = "0" if s_ == 0 else "v[16:19]"
            a(f"v_mfma_f32_16x16x32_bf16 v[16:19], {vr(64+4*s_,4)}, {vr(80+4*s_,4)}, {c}")
        a("s_mov_b32 exec_lo, 0x000f000f")
        a("s_mov_b32 exec_hi, 0x000f000f")
        for r in range(4):
            a(f"v_mul_f32 v{16+r}, v{16+r}, v15")
        a("v_cvt_pk_bf16_f32 v20, v16, v17")
        a("v_cvt_pk_bf16_f32 v21, v18, v19")
        a(f"v_bfi_b32 v20, {vC1}, {vMa}, v20")
        a(f"v_bfi_b32 v21, {vC1}, {vMb}, v21")
        a(f"buffer_store_dwordx2 v[20:21], v34, {sWS}, {t3} offen sc1")
        a("s_mov_b64 exec, -1")
        self.stamp("a1")
        a(f"s_cmp_lg_u32 {sW}, 0")
        a("s_cbranch_scc1 A_HELP")
        a(f"v_lshrrev_b32 v11, 2, {vJ}")
        a(f"v_lshlrev_b32 v11, 3, v11")
        a(f"v_and_b32 v12, 3, {vJ}")
        a(f"v_add_u32 v11, v11, v12")
        a(f"v_lshlrev_b32 v11, 13, v11")
        a(f"v_lshl_add_u32 v11, {vG}, 4, v11")
        a(f"s_lshl_b32 {t2}, {sI}, 19")
        a(f"s_lshl_b32 {t1}, {sH}, 8")
        a(f"s_add_u32 {t2}, {t2}, {t1}")
        for t in range(4):
            a(f"s_add_u32 {t1}, {t2}, {(32*(t>>1)+4*(t&1))*8192}")
            for k in range(4):
                a(f"buffer_load_dwordx4 {ar((t*4+k)*4,4)}, v11, {sWUK}, {t1} offen offset:{k*64}{nt}")
        a(f"v_lshrrev_b32 v10, 2, {vJ}")
        a(f"v_lshlrev_b32 v10, 9, v10")
        a(f"v_lshrrev_b32 v11, 1, {vG}")
        a(f"v_lshl_add_u32 v10, v11, 7, v10")
        a(f"v_and_b32 v11, 3, {vJ}")
        a(f"v_lshl_add_u32 v10, v11, 5, v10")
        a(f"v_and_b32 v11, 1, {vG}")
        a(f"v_lshl_add_u32 v10, v11, 4, v10")
        a(f"s_lshl_b32 {t0}, {sH}, 12")
        a(f"s_add_u32 {t0}, {t0}, {H1}")
        a(f"v_and_b32 v9, 3, {vJ}")
        a(f"v_lshlrev_b32 v9, 15, v9")
        a(f"v_bfe_u32 v11, {vJ}, 2, 1")
        a(f"v_lshl_add_u32 v9, v11, 6, v9")
        a(f"v_lshl_add_u32 v9, {vG}, 4, v9")
        a(f"s_lshl_b32 {t2}, {sH}, 3")
        a(f"s_add_u32 {t2}, {t2}, {sI}")
        a(f"s_lshl_b32 {t2}, {t2}, 7")
        a(f"s_add_u32 {t2}, {t2}, {H2}")
        a(f"v_mov_b32 v13, 1")
        a(f"v_mov_b32 v8, {FLAG+16}")
        a("s_waitcnt vmcnt(16)")
        self.stamp("ack1")
        a("H1_RETRY:")
        for k in range(4):
            a(f"buffer_load_dwordx4 {vr(64+4*k,4)}, v10, {sWS}, {t0} offen offset:{(k>>1)*2048+(k&1)*256} sc1")
        self.spin_check()
        a("v_mov_b32 v12, 0")
        a("s_waitcnt vmcnt(0)")
        for k in range(4):
            for q in range(4):
                a(f"v_bitop3_b32 v12, v12, v{64+4*k+q}, {sM[q]} bitop3:0xf6")
        self.tagcheck_end("v12", "H1_RETRY")
        self.stamp("h1")
        for k in range(4):
            for t in range(4):
                c = "0" if k == 0 else vr(20+4*t, 4)
                a(f"v_mfma_f32_16x16x32_bf16 {vr(20+4*t,4)}, {ar((t*4+k)*4,4)}, {vr(64+4*k,4)}, {c}")
        for r in range(16):
            a(f"v_add_f32_dpp v{20+r}, v{20+r}, v{20+r} row_ror:8 row_mask:0xf bank_mask:0xf")
        for r in range(8):
            a(f"v_add_f32_dpp v{36+r}, v{20+r}, v{20+r} row_ror:12 row_mask:0xf bank_mask:0xf")
        for r in range(8):
            a(f"v_add_f32_dpp v{36+r}, v{28+r}, v{28+r} row_ror:4 row_mask:0xf bank_mask:0x2")
        for q in range(4):
            a(f"v_cvt_pk_bf16_f32 v{44+q}, v{36+2*q}, v{37+2*q}")
        for q in range(4):
            a(f"v_bfi_b32 v{44+q}, {vC1}, {sM[q]}, v{44+q}")
        a("s_mov_b32 exec_lo, 0x00ff00ff")
        a("s_mov_b32 exec_hi, 0x00ff00ff")
        a(f"buffer_store_dwordx4 v[44:47], v9, {sWS}, {t2} offen sc1")
        a("s_mov_b64 exec, -1")
        self.h2_addr()
        self.b_hook()
        a("s_waitcnt vmcnt(0)")
        a(f"v_mov_b32 v8, {FLAG+16}")
        a("ds_write_b32 v8, v13")
        self.stamp("h2pub")
        a("s_branch H2_ISSUE")
        a("A_HELP:")
        self.b_hook()
        self.h2_addr()
        a(f"v_mov_b32 v12, {FLAG+16}")
        a("A_SPIN:")
        a("ds_read_b32 v13, v12")
        self.spin_check()
        a("s_waitcnt lgkmcnt(0)")
        a("v_cmp_eq_u32 vcc, 0, v13")
        a("s_cbranch_vccnz A_SPIN")
        a("H2_ISSUE:")
        self.h2_issue()
        a("JOIN_X1:")

    def b_hook(self, kwave=True):
        if self.stop > 2:
            from gen_rest import b_addr
            b_addr(self, kwave)

    def h2_addr(self):
        a = self.a
        a(f"v_lshrrev_b32 v8, 3, {vL}")
        a(f"v_lshlrev_b32 v8, 10, v8")
        a(f"v_and_b32 v9, 7, {vL}")
        a(f"v_xor_b32 v9, v9, {vG}")
        a(f"v_lshl_add_u32 v14, v9, 4, v8")
        a(f"v_xor_b32 v9, 4, v9")
        a(f"v_lshl_add_u32 v15, v9, 4, v8")
        a(f"v_add_u32 v15, 8192, v15")
        a(f"s_lshl_b32 {sT[3]}, {sB}, 1")
        a(f"s_add_u32 {sT[3]}, {sT[3]}, {sHG}")
        a(f"s_lshl_b32 {sT[3]}, {sT[3]}, 14")
        a(f"s_lshl_b32 {sT[0]}, {sW}, 8")
        a(f"s_add_u32 {sT[3]}, {sT[3]}, {sT[0]}")
        a(f"s_add_u32 {sT[3]}, {sT[3]}, {H2}")
        a(f"s_lshl_b32 {sT[4]}, {sW}, 12")
        a(f"s_add_u32 {sT[4]}, {sT[4]}, {QS}")

    def h2_issue(self):
        a = self.a
        for nn in range(4):
            a(f"s_add_u32 {sT[0]}, {sT[4]}, {nn*1024}")
            a(f"s_mov_b32 m0, {sT[0]}")
            a(f"s_add_u32 {sT[1]}, {sT[3]}, {(nn>>1)*128}")
            a(f"buffer_load_dwordx4 v{14+(nn&1)}, {sWS}, {sT[1]} offen sc1 lds")

    def finish(self):
        a = self.a
        a("FIN:")
        if self.stamps:
            lab = a.label("NOST")
            a(f"s_and_b32 {sT[0]}, {sW}, 3")
            a(f"s_cmp_lg_u32 {sT[0]}, 0")
            a(f"s_cbranch_scc1 {lab}")
            a(f"s_lshl_b32 {sT[0]}, s2, 1")
            a(f"s_lshr_b32 {sT[1]}, {sW}, 2")
            a(f"s_add_u32 {sT[0]}, {sT[0]}, {sT[1]}")
            a(f"s_lshl_b32 {sT[0]}, {sT[0]}, 7")
            a(f"s_add_u32 {sT[0]}, {sT[0]}, {DBGT}")
            a("s_memrealtime s[100:101]")
            a("s_waitcnt lgkmcnt(0)")
            a("v_mov_b32 v8, 0")
            for i in range(11):
                a(f"v_mov_b32 v10, s{80+2*i}")
                a(f"v_mov_b32 v11, s{81+2*i}")
                a(f"buffer_store_dwordx2 v[10:11], v8, {sWS}, {sT[0]} offen offset:{i*8}")
                a("s_nop 1")
            a("s_waitcnt vmcnt(0)")
            a(f"{lab}:")
        a("END:")
        a("s_endpgm")
        a("FAIL:")
        a("s_load_dwordx2 s[64:65], s[0:1], 88")
        a("s_waitcnt lgkmcnt(0)")
        a("s_mov_b32 s66, 256")
        a("s_mov_b32 s67, 0x20000")
        a("v_mov_b32 v8, 0")
        a("v_mov_b32 v9, 0xdead")
        a("buffer_store_dword v9, v8, s[64:67], 0 offen")
        a("s_waitcnt vmcnt(0)")
        a("s_endpgm")

    def build(self):
        self.prologue()
        self.phaseA_entry()
        return self.wrap()

    def phaseA_entry(self):
        a = self.a
        self.phaseA()
        if self.stop <= 2:
            a("s_waitcnt vmcnt(0)")
            a("s_barrier")
            a("s_branch FIN")
            self.loader()
            self.finish()
            return
        from gen_rest import rest
        rest(self)

    def wrap(self):
        body = self.a.finish()
        hdr = open('cdna_kernels/%s.s.ref' % KNAME[:-7]).read().split('\n')
        com = [l for l in hdr if l.startswith(';') and '@launch' not in l and not l.startswith('; Override') and not l.startswith('; grid=')]
        com = com[:15]
        head = '\n'.join(com) + f"\n; @launch grid=(256,1,1) block=(512,1,1) lds={LDS_BYTES}\n"
        head += f""".amdgcn_target "amdgcn-amd-amdhsa--gfx950"
.text
.globl {KNAME}
.p2align 8
.type {KNAME},@function
{KNAME}:
"""
        tail = f"""
.section .rodata,"a"
.p2align 6
.amdhsa_kernel {KNAME}
  .amdhsa_next_free_vgpr 256
  .amdhsa_next_free_sgpr 102
  .amdhsa_accum_offset 128
  .amdhsa_group_segment_fixed_size 0
  .amdhsa_kernarg_size 104
  .amdhsa_user_sgpr_count 2
  .amdhsa_user_sgpr_kernarg_segment_ptr 1
  .amdhsa_system_sgpr_workgroup_id_x 1
.end_amdhsa_kernel
"""
        return head + body + tail

if __name__ == "__main__":
    import argparse
    p = argparse.ArgumentParser()
    p.add_argument("--stop", type=int, default=99)
    p.add_argument("--stamps", default="")
    p.add_argument("--no-nt", action="store_true")
    p.add_argument("--TH", type=int, default=8)
    p.add_argument("--N1", type=int, default=8)
    p.add_argument("--perturb", type=float, default=0)
    p.add_argument("--bar_op", type=int, default=0)
    p.add_argument("--early_uv", type=int, default=8)
    p.add_argument("--early_wo", type=int, default=8)
    p.add_argument("--early_gu", type=int, default=2)
    p.add_argument("-o", default="k.s")
    args = p.parse_args()
    g = Gen(stop=args.stop, stamps=(["start"] + args.stamps.split(",") if args.stamps else None), nt=not args.no_nt, TH=args.TH, N1=args.N1)
    g.perturb = args.perturb
    g.bar_op = args.bar_op; g.early_uv = args.early_uv; g.early_wo = args.early_wo; g.early_gu = args.early_gu
    s = g.build()
    open(args.o, "w").write(s)
    print("wrote", args.o, len(s), "bytes; nops inserted:", g.a.nops)
```
